```python
import torch

def _softmax(x, axis=-1):
    return torch.softmax(x, dim=axis)
def _gelu(x):
    return torch.nn.functional.gelu(x, approximate="tanh")
def _silu(x):
    return torch.nn.functional.silu(x)
def _sigmoid(x):
    return torch.sigmoid(x)
def _layernorm(x, axis=-1, eps=1e-5):
    m = x.mean(dim=axis, keepdim=True)
    v = x.var(dim=axis, keepdim=True, unbiased=False)
    return (x - m) / torch.sqrt(v + eps)
def _scatter_add(tgt, idx, src, axis=0):
    return tgt.clone().index_add_(axis, idx, src)
def _segment_sum(src, seg, n):
    out = torch.zeros((n,) + src.shape[1:], dtype=src.dtype)
    return out.index_add_(0, seg, src)
def _pad(x, pw):
    flat = tuple(v for pair in reversed(pw) for v in pair)
    return torch.nn.functional.pad(x, flat)

kernel_name = 'concat_heads__mha_block__linear_attn_block__prompt'

def setup_inputs():

    _w = (lambda a: (lambda t: t.to(torch.bfloat16) if t.is_floating_point() else t)(torch.as_tensor(a)))
    def _A_setup():
        B, S, D, H = 1, 2048, 640, 32
        return {
            "x": _w((lambda *s: torch.randn(*s, dtype=torch.bfloat16) * 0.2)(B, S, D)),
            "wqkv": _w((lambda *s: torch.randn(*s, dtype=torch.bfloat16) * 0.2)(D, 3 * D)),
            "wo": _w((lambda *s: torch.randn(*s, dtype=torch.bfloat16) * 0.05)(D, D)),
        }
    _A_in = _A_setup()

    def _B_setup():
        B, S, D = 1, 2048, 640
        return {
            "x": _w((lambda *s: torch.randn(*s, dtype=torch.bfloat16) * 0.05)(B, S, D)),
            "wqkv": _w((lambda *s: torch.randn(*s, dtype=torch.bfloat16) * 1.6)(D, 3 * D)),
            "wo": _w((lambda *s: torch.randn(*s, dtype=torch.bfloat16) * 0.05)(D, D)),
        }
    _B_in = _B_setup()

    return {
        "A_x": _A_in["x"],
        "A_wqkv": _A_in["wqkv"],
        "A_wo": _A_in["wo"],
        "B_x": _B_in["x"],
        "B_wqkv": _B_in["wqkv"],
        "B_wo": _B_in["wo"],
    }

def reference(A_x, A_wqkv, A_wo, B_x, B_wqkv, B_wo):
    def _A_ref(x, wqkv, wo):
        B, S, D = x.shape
        H = 32
        Dh = D // H
        qkv = (lambda x, *d: x.permute(*d))((x @ wqkv).reshape(B, S, 3, H, Dh), 2, 0, 3, 1, 4)
        q, k, v = qkv[0], qkv[1], qkv[2]
        scores = torch.einsum("bhqd,bhkd->bhqk", q, k) * (Dh ** -0.5)
        p = _softmax(scores, axis=-1)
        o = torch.einsum("bhqk,bhkd->bhqd", p, v)
        return (lambda x, *d: x.permute(*d))(o, 0, 2, 1, 3).reshape(B, S, D) @ wo

    def _B_ref(x, wqkv, wo):
        B, S, D = x.shape
        H = 32; Dh = D // H
        qkv = (lambda x, *d: x.permute(*d))((x @ wqkv).reshape(B, S, 3, H, Dh), 2, 0, 3, 1, 4)
        q, k, v = qkv[0], qkv[1], qkv[2]
        phi = lambda t: torch.where(t > 0, t + 1, torch.exp(t)) + 1e-6
        pq, pk = phi(q), phi(k)
        kv = torch.einsum("bhsd,bhse->bhde", pk, v)
        z = torch.einsum("bhsd->bhd", pk)
        num = torch.einsum("bhqd,bhde->bhqe", pq, kv)
        den = torch.einsum("bhqd,bhd->bhq", pq, z)[..., None] + 1e-6
        o = num / den
        return (lambda x, *d: x.permute(*d))(o, 0, 2, 1, 3).reshape(B, S, D) @ wo

    a = _A_ref(A_x, A_wqkv, A_wo)
    b = _B_ref(B_x, B_wqkv, B_wo)
    return torch.concatenate([a, b], axis=-1)
```

```python
import re

class Asm:
    def __init__(self):
        self.lines = []
    def __call__(self, s):
        for l in s.strip("\n").split("\n"):
            l = l.strip()
            if l:
                self.lines.append(l if l.endswith(":") else "    " + l)
    def text(self):
        return "\n".join(self.lines) + "\n"

def vr(a, n=1):
    return f"v{a}" if n == 1 else f"v[{a}:{a+n-1}]"
def sr(a, n=1):
    return f"s{a}" if n == 1 else f"s[{a}:{a+n-1}]"

TRANS = ("v_exp_", "v_log_", "v_rcp_", "v_rsq_", "v_sqrt_", "v_sin_", "v_cos_")
def _regs(tok):
    tok = tok.strip()
    m = re.fullmatch(r"-?\|?([vsa])(\d+)\|?", tok)
    if m: return {(m.group(1), int(m.group(2)))}
    m = re.fullmatch(r"-?([vsa])\[(\d+):(\d+)\]", tok)
    if m: return {(m.group(1), i) for i in range(int(m.group(2)), int(m.group(3)) + 1)}
    if tok == "vcc": return {("s", "vcc")}
    if tok == "exec": return {("s", "exec")}
    if tok == "m0": return {("s", "m0")}
    return set()

class Ins:
    def __init__(self, text):
        self.text = text
        t = text.split(";")[0].strip()
        parts = t.split(None, 1)
        self.op = parts[0]
        ops = [o.strip() for o in parts[1].split(",")] if len(parts) > 1 else []
        if ops:
            ops[-1] = ops[-1].split()[0] if ops[-1] else ops[-1]
        self.ops = ops
        op = self.op
        self.mfma = op.startswith("v_mfma")
        self.valu = op.startswith("v_") and not self.mfma
        self.trans = op.startswith(TRANS)
        self.vmem = op.startswith(("buffer_", "global_"))
        self.ds = op.startswith("ds_")
        self.salu = op.startswith("s_")
        self.lds_dma = self.vmem and re.search(r"\blds\b", t) is not None
        self.store = self.vmem and ("store" in op or "atomic" in op)
        R = [_regs(o) for o in ops]
        self.w = set(); self.r = set()
        self.srcC = set(); self.srcAB = set()
        if self.mfma:
            self.w = R[0]; self.srcAB = R[1] | R[2]; self.srcC = R[3]; self.r = self.srcAB | self.srcC
        elif self.valu:
            if op.startswith("v_cmp"):
                self.w = R[0]; self.r = set().union(*R[1:])
            elif op.startswith("v_permlane") and "swap" in op:
                self.w = R[0] | R[1]; self.r = R[0] | R[1]
            elif op.startswith(("v_readfirstlane", "v_readlane")):
                self.w = R[0]; self.r = set().union(*R[1:])
            else:
                self.w = R[0]; self.r = set().union(*R[1:]) if len(R) > 1 else set()
                if op.startswith(("v_fmac", "v_pk_fmac")): self.r |= R[0]
                if op.startswith("v_cndmask") and len(ops) == 3: self.r |= {("s", "vcc")}
        elif self.vmem:
            if self.lds_dma:
                self.r = set().union(*R) | {("s", "m0")}
            elif self.store:
                self.r = set().union(*R); self.sdata = R[0]
            else:
                self.w = R[0]; self.r = set().union(*R[1:])
        elif self.ds:
            if op.startswith(("ds_read", "ds_bpermute", "ds_permute", "ds_swizzle")):
                self.w = R[0]; self.r = set().union(*R[1:])
            else:
                self.r = set().union(*R)
        elif self.salu:
            if op.startswith(("s_cmp", "s_waitcnt", "s_barrier", "s_nop", "s_branch", "s_cbranch", "s_endpgm", "s_setprio", "s_sleep")):
                self.r = set().union(*R) if R else set()
            else:
                self.w = R[0] if R else set(); self.r = set().union(*R[1:]) if len(R) > 1 else set()
                if "saveexec" in op: self.w |= {("s", "exec")}
        self.states = 1
        if op == "s_nop": self.states = int(ops[0], 0) + 1
        self.wide = self.store and ("x3" in op or "x4" in op)

def check_hazards(text):
    ins = []; labels = {}
    for l in text.split("\n"):
        s = l.split(";")[0].strip()
        if not s or s.startswith("."): continue
        if s.endswith(":"):
            labels[s[:-1]] = len(ins); continue
        ins.append(Ins(s))
    def succ(i):
        x = ins[i]
        if x.op == "s_endpgm": return []
        if x.op == "s_branch": return [labels[x.ops[0]]]
        o = [i + 1] if i + 1 < len(ins) else []
        if x.op.startswith("s_cbranch"): o.append(labels[x.ops[0]])
        return o
    def need(p, c):
        n = 0
        pv = {r for r in p.w if r[0] in "va"}; ps = {r for r in p.w if r[0] == "s"}
        if p.mfma:
            if c.mfma:
                if c.srcAB & p.w: n = max(n, 12)
                if c.srcC & p.w and c.srcC != p.w: n = max(n, 10)
            elif (c.valu or c.vmem or c.ds) and ((c.r | c.w) & p.w): n = max(n, 12)
            if c.valu and (c.w & p.srcC) : n = max(n, 7)
        if p.valu:
            if c.mfma and (c.r & pv): n = max(n, 2)
            if p.trans and c.valu and not c.trans and (c.r & pv): n = max(n, 1)
            if c.op.startswith("v_permlane") and (c.r & pv): n = max(n, 2)
            if c.op.startswith(("v_readfirstlane", "v_readlane")) and (c.r & pv): n = max(n, 1)
            if "dpp" in c.text and (c.r & pv): n = max(n, 2)
            if c.vmem and (c.r & ps): n = max(n, 5)
            if c.valu and (c.r & ps): n = max(n, 2)
            if ("s", "exec") in ps and c.mfma: n = max(n, 4)
        if p.salu and ("s", "m0") in p.w and c.lds_dma: n = max(n, 1)
        if p.wide and c.valu and (c.w & p.sdata): n = max(n, 2)
        if p.wide and not c.valu and (c.w & p.sdata): n = max(n, 1)
        return n
    bad = []
    for i, p in enumerate(ins):
        if not (p.mfma or p.valu or p.salu or p.wide): continue
        maxd = 12 if p.mfma else 5
        stack = [(j, 0) for j in succ(i)]; seen = set()
        while stack:
            j, d = stack.pop()
            if (j, d) in seen or d >= maxd: continue
            seen.add((j, d))
            c = ins[j]
            n = need(p, c)
            if n > d: bad.append(f"hazard: [{p.text}] -> [{c.text}] has {d} states, needs {n}")
            for k in succ(j): stack.append((k, d + c.states))
    return sorted(set(bad))
```

```python
import struct, sys, math
from asmlib import Asm, vr, sr, check_hazards

NAME = "concat_heads__mha_block__linear_attn_block__prompt"
def fbits(x): return struct.unpack("<I", struct.pack("<f", x))[0]
LOG2E = math.log2(math.e)
QSCALE = LOG2E / math.sqrt(20.0)

SEC = 0x280000
WS_QA, WS_KA, WS_VA, WS_QB, WS_KVP, WS_OA, WS_OB = 0, SEC, 2*SEC, 3*SEC, 4*SEC, 6*SEC, 7*SEC
WS_SIZE = 8 * SEC
HS = 81920

OPT = dict(ld_aux1="", ld_aux3="", stamps=False)

def srd(a, d, lo, size):
    a(f"""s_mov_b32 s{d}, s{lo}
          s_and_b32 s{d+1}, s{lo+1}, 0xffff
          s_mov_b32 s{d+2}, {size}
          s_mov_b32 s{d+3}, 0x20000""")

def stamp(a, idx):
    if not OPT["stamps"]: return
    a(f"s_memrealtime s[{90+2*idx}:{91+2*idx}]")

def stamp_flush(a, kidx, n, wsreg, lbl):
    if not OPT["stamps"]: return
    a(f"""s_waitcnt lgkmcnt(0)
          s_lshl_b32 s88, s2, 4
          s_add_u32 s88, s88, s16
          s_lshl_b32 s88, s88, 5
          s_add_u32 s88, s88, {WS_SIZE + kidx*0x40000}
          s_mov_b64 exec, 1
          v_mov_b32 v1, s88""")
    for i in range(n):
        a(f"v_mov_b32 v2, s{90+2*i}\nbuffer_store_dword v2, v1, s[{wsreg}:{wsreg+3}], 0 offen offset:{4*i}")
    a("s_mov_b64 exec, -1")

XA, WA = 16, 20
FR = 32
ACC = 128

def gemm_loader(a, p, TM, nslots, pitch, kvflag, aux):
    NX = TM // 32
    SB = TM * 128 + 16384
    per = NX + 4
    a(f"""{p}_loader:
          v_and_b32 v1, 63, v0
          v_lshrrev_b32 v2, 3, v1
          v_mul_u32_u24 v2, 1280, v2
          v_lshrrev_b32 v3, 4, v1
          v_and_b32 v4, 7, v1
          v_xor_b32 v4, v4, v3
          v_lshl_add_u32 v8, v4, 4, v2
          v_xor_b32 v9, 64, v8
          v_and_b32 v4, 15, v1
          v_lshlrev_b32 v5, 2, v3
          v_xor_b32 v4, v4, v5
          v_mul_u32_u24 v2, {pitch}, v3
          v_lshl_add_u32 v10, v4, 4, v2""")
    if kvflag:
        a(f"""v_lshrrev_b32 v4, 3, v4
              v_mul_u32_u24 v4, s{kvflag}, v4
              v_add_u32 v10, v10, v4""")
    a(f"""s_sub_u32 s30, s16, 4
          s_mul_i32 s31, s30, {NX*8*1280}
          s_add_u32 s24, s24, s31
          s_mul_i32 s31, s30, {16*pitch}
          s_add_u32 s25, s25, s31
          s_mul_i32 s32, s30, {NX*1024}
          s_lshl_b32 s33, s30, 12
          s_add_u32 s33, s33, {TM*128}
          s_mov_b32 s34, 0
          s_mov_b32 s35, 0
          {p}_ld_loop:
          s_cmp_lt_u32 s34, {nslots}
          s_cbranch_scc1 {p}_ld_issue
          s_cmp_lg_u32 s34, {nslots}
          s_cbranch_scc1 {p}_ld_w
          s_waitcnt vmcnt({min(63, per*(nslots-1))})
          s_barrier
          {p}_ld_w:
          s_waitcnt vmcnt({per*(nslots-2)})
          s_barrier
          {p}_ld_issue:
          s_add_u32 s36, s35, s32
          s_add_u32 s37, s35, s33""")
    for i in range(NX):
        a(f"""s_add_u32 m0, s36, {i*1024}
              s_add_u32 s38, s24, {i*8*1280}
              buffer_load_dwordx4 v{8+(i&1)}, s[4:7], s38 offen lds {aux}""")
    for i in range(4):
        a(f"""s_add_u32 m0, s37, {i*1024}
              s_add_u32 s38, s25, {i*4*pitch}
              buffer_load_dwordx4 v10, s[8:11], s38 offen lds {aux}""")
    a(f"""s_add_u32 s24, s24, 128
          s_add_u32 s25, s25, {64*pitch}
          s_add_u32 s35, s35, {SB}
          s_cmp_eq_u32 s35, {SB*nslots}
          s_cselect_b32 s35, 0, s35
          s_add_u32 s34, s34, 1
          s_cmp_lt_u32 s34, 10
          s_cbranch_scc1 {p}_ld_loop""")
    for r in range(nslots - 2, -1, -1):
        a(f"s_waitcnt vmcnt({per*r})\ns_barrier")
    a("s_endpgm")

def gemm_consumer_setup(a, TM, NCT):
    a(f"""v_and_b32 v1, 63, v0
          v_and_b32 v2, 31, v1
          v_lshrrev_b32 v3, 5, v1
          v_add_u32 v4, s40, v2
          v_lshrrev_b32 v5, 1, v4
          v_and_b32 v5, 7, v5
          v_xor_b32 v5, v5, v3
          v_lshlrev_b32 v4, 7, v4
          v_lshl_add_u32 v{XA}, v5, 4, v4
          v_xor_b32 v{XA+1}, 32, v{XA}
          v_xor_b32 v{XA+2}, 64, v{XA}
          v_xor_b32 v{XA+3}, 0x60, v{XA}
          v_and_b32 v4, 15, v1
          v_lshrrev_b32 v5, 2, v4
          v_lshl_add_u32 v6, v3, 3, v5
          v_lshlrev_b32 v6, 8, v6
          v_bfe_u32 v7, v1, 4, 1
          v_lshlrev_b32 v7, 1, v7
          v_bfe_u32 v8, v1, 1, 1
          v_add_u32 v7, v7, v8
          v_lshlrev_b32 v5, 2, v5
          v_xor_b32 v7, v7, v5
          v_lshl_add_u32 v6, v7, 4, v6
          v_and_b32 v7, 1, v1
          v_lshl_add_u32 v6, v7, 3, v6
          v_add_u32 v6, {TM*128}, v6
          s_lshl_b32 s42, s41, 6
          v_xor_b32 v{WA}, s42, v6""")
    for c in range(1, NCT):
        a(f"v_xor_b32 v{WA+c}, {c*64}, v{WA}")
    for r in range(2 * NCT * 16):
        a(f"v_mov_b32 v{ACC+r}, 0")

def gemm_reads(NCT, buf, ks):
    b = FR + 24 * buf
    o = [f"ds_read_b128 {vr(b+4*tt,4)}, v{XA+ks} offset:{tt*4096}" for tt in range(2)]
    for c in range(NCT):
        for u in range(2):
            o.append(f"ds_read_b64_tr_b16 {vr(b+8+4*c+2*u,2)}, v{WA+c} offset:{ks*4096+u*1024}")
    return o

def gemm_mainloop(a, p, TM, NCT, nslots, orientF):
    SB = TM * 128 + 16384
    a(f"s_mov_b32 s43, 0\ns_mov_b32 s44, 0\ns_mov_b32 s48, {SB}\ns_barrier")
    for r in gemm_reads(NCT, 0, 0): a(r)
    a(f"{p}_loop:")
    nm = 2 * NCT
    for ks in range(4):
        b = FR + 24 * (ks & 1)
        mf = []
        for c in range(NCT):
            for tt in range(2):
                d = vr(ACC + (tt * NCT + c) * 16, 16)
                xf, wf = vr(b + 4 * tt, 4), vr(b + 8 + 4 * c, 4)
                A, B = (xf, wf) if orientF else (wf, xf)
                mf.append(f"v_mfma_f32_32x32x16_bf16 {d}, {A}, {B}, {d}")
        rd = gemm_reads(NCT, (ks + 1) & 1, (ks + 1) & 3)
        a("s_waitcnt lgkmcnt(0)")
        per = -(-len(rd) // (nm - 1)) if NCT == 2 else 2
        for i, m in enumerate(mf):
            a(m)
            if ks == 3 and i == 0:
                a(f"""s_add_u32 s44, s44, 1
                      s_cmp_eq_u32 s44, {nslots}
                      s_cselect_b32 s45, {(-(nslots-1)*SB) & 0xffffffff}, s48
                      s_cselect_b32 s44, 0, s44
                      s_cmp_eq_u32 s43, 9
                      s_cbranch_scc1 {p}_nobar
                      s_barrier
                      {p}_nobar:""")
                for r in list(range(XA, XA + 4)) + list(range(WA, WA + NCT)):
                    a(f"v_add_u32 v{r}, s45, v{r}")
            for r in rd[i * per:(i + 1) * per]: a(r)
    a(f"""s_add_u32 s43, s43, 1
          s_cmp_lt_u32 s43, 10
          s_cbranch_scc1 {p}_loop
          s_waitcnt lgkmcnt(0)
          s_nop 7
          s_nop 3""")

def phi_pair(a, r, t, dst):
    a(f"""v_pk_mul_f32 {vr(t,2)}, {vr(r,2)}, s[50:51]
          v_max_f32 v{r}, s52, v{r}
          v_exp_f32_e64 v{t}, v{t} clamp
          v_exp_f32_e64 v{t+1}, v{t+1} clamp
          v_max_f32 v{r+1}, s52, v{r+1}
          v_pk_add_f32 {vr(r,2)}, {vr(r,2)}, {vr(t,2)}
          v_cvt_pk_bf16_f32 v{dst}, v{r}, v{r+1}""")

def k1(a):
    p = "k1"
    TM, NCT, NSL = 256, 4, 3
    a(f"""s_cmp_ge_u32 s2, 256
          s_cbranch_scc1 k1_exit
          s_load_dwordx4 s[60:63], s[0:1], 0
          s_load_dwordx4 s[64:67], s[0:1], 24
          s_load_dwordx2 s[68:69], s[0:1], 64
          v_lshrrev_b32 v1, 6, v0
          s_and_b32 s17, s2, 7
          s_lshr_b32 s18, s2, 3
          v_readfirstlane_b32 s16, v1
          s_lshr_b32 s19, s17, 2
          s_and_b32 s20, s17, 1
          s_bfe_u32 s21, s17, 0x10001
          s_and_b32 s22, s18, 3
          s_lshr_b32 s23, s18, 2
          s_lshl_b32 s26, s21, 3
          s_add_u32 s23, s23, s26""")
    a(f"""s_cmp_lg_u32 s19, 0
          s_cbranch_scc1 k1_dec
          s_cmp_lt_u32 s18, 28
          s_cbranch_scc1 k1_dec
          s_cmp_ge_u32 s18, 30
          s_cbranch_scc1 k1_exit
          s_sub_u32 s22, s18, 28
          s_lshl_b32 s26, s21, 1
          s_add_u32 s22, s22, s26
          s_mov_b32 s23, 7
          k1_dec:
          s_lshl_b32 s20, s20, 2
          s_add_u32 s22, s22, s20
          s_mul_i32 s24, s22, {256*1280}
          s_lshl_b32 s25, s23, 8
          s_mul_i32 s26, s23, 52
          s_lshr_b32 s26, s26, 8
          s_mul_i32 s27, s26, 5
          s_sub_u32 s27, s23, s27
          s_lshl_b32 s27, s27, 7
          s_mov_b32 s46, 0
          s_mov_b32 s47, 0
          s_cmp_eq_u32 s26, 2
          s_cselect_b32 s46, 1, 0
          s_mul_i32 s28, s26, {SEC}
          s_cmp_lg_u32 s19, 0
          s_cbranch_scc0 k1_dec2
          s_mov_b32 s28, {WS_QB}
          s_mov_b32 s46, 0
          s_cmp_lt_u32 s23, 5
          s_cbranch_scc1 k1_dec2
          s_mov_b32 s46, 2
          s_mov_b32 s47, 1152
          s_sub_u32 s23, s23, 5
          s_mul_i32 s25, s23, 120
          s_add_u32 s25, s25, 1280
          k1_dec2:""")
    stamp(a, 0)
    a(f"""s_waitcnt lgkmcnt(0)
          s_cmp_lg_u32 s19, 0
          s_cselect_b32 s60, s64, s60
          s_cselect_b32 s61, s65, s61
          s_cselect_b32 s62, s66, s62
          s_cselect_b32 s63, s67, s63""")
    srd(a, 4, 60, 2048*640*2)
    srd(a, 8, 62, 640*1920*2)
    srd(a, 12, 68, WS_SIZE + (0x400000 if OPT["stamps"] else 0))
    a(f"""s_cmp_ge_u32 s16, 4
          s_cbranch_scc1 k1_loader
          s_lshl_b32 s40, s16, 6
          s_mov_b32 s41, 0""")
    gemm_consumer_setup(a, TM, NCT)
    a(f"""s_mov_b32 s50, {fbits(LOG2E)}
          s_mov_b32 s51, {fbits(LOG2E)}
          s_mov_b32 s52, {fbits(1e-6)}
          s_cmp_lg_u32 s46, 0
          s_cbranch_scc1 k1_F""")
    gemm_mainloop(a, "k1T", TM, NCT, NSL, False)
    stamp(a, 1)
    a(f"""s_add_u32 s30, s19, s26
          s_cmp_eq_u32 s30, 0
          s_cselect_b32 s54, {fbits(QSCALE)}, 1.0
          s_mov_b32 s55, s54
          s_mov_b32 s56, {HS-40}
          v_and_b32 v1, 31, v0
          v_bfe_u32 v2, v0, 5, 1
          s_lshl_b32 s30, s22, 8
          s_add_u32 s30, s30, s40
          v_add_u32 v1, s30, v1
          v_mul_u32_u24 v1, 40, v1
          v_lshl_add_u32 v1, v2, 3, v1
          s_lshl_b32 s31, s27, 1
          s_add_u32 s31, s31, s28
          v_add_u32 v1, s31, v1
          s_lshr_b32 s31, s27, 2
          v_add_u32 v2, s31, v2
          v_mul_u32_u24 v2, 205, v2""")
    n = 0
    for c in range(NCT):
        for i in range(4):
            g = 8 * c + 2 * i
            ad = 4 + (n & 1)
            a(f"""v_add_u32 v3, {g*205}, v2
                  v_lshrrev_b32 v3, 10, v3
                  v_mad_u32_u24 v{ad}, v3, s56, v1""")
            for tt in range(2):
                r = ACC + (tt * NCT + c) * 16 + 4 * i
                d = 32 + 2 * ((2 * n + tt) & 7)
                a(f"""v_pk_mul_f32 {vr(r,2)}, {vr(r,2)}, s[54:55]
                      v_pk_mul_f32 {vr(r+2,2)}, {vr(r+2,2)}, s[54:55]
                      v_cvt_pk_bf16_f32 v{d}, v{r}, v{r+1}
                      v_cvt_pk_bf16_f32 v{d+1}, v{r+2}, v{r+3}
                      buffer_store_dwordx2 {vr(d,2)}, v{ad}, s[12:15], 0 offen offset:{g*8+tt*1280}""")
            n += 1
    stamp(a, 2)
    stamp_flush(a, 0, 3, 12, "k1a")
    a("s_endpgm")
    a("k1_F:")
    gemm_mainloop(a, "k1F", TM, NCT, NSL, True)
    stamp(a, 1)
    a(f"""s_cmp_eq_u32 s46, 2
          s_cbranch_scc1 k1_KV
          s_mov_b32 s56, {HS-320}
          v_and_b32 v1, 31, v0
          v_bfe_u32 v2, v0, 5, 1
          v_add_u32 v1, s27, v1
          v_mul_u32_u24 v2, 320, v2
          s_lshl_b32 s30, s22, 4
          s_lshl_b32 s31, s16, 2
          s_add_u32 s30, s30, s31
          s_mul_i32 s30, s30, 640
          s_add_u32 s30, s30, s28
          v_add_u32 v2, s30, v2""")
    n = 0
    for c in range(NCT):
        a(f"""v_add_u32 v3, {32*c}, v1
              v_lshl_add_u32 v4, v3, 4, v2
              v_mul_u32_u24 v3, 3277, v3
              v_lshrrev_b32 v3, 16, v3
              v_mad_u32_u24 v{5+(c&1)}, v3, s56, v4""")
        for tt in range(2):
            for j in range(2):
                r = ACC + (tt * NCT + c) * 16 + 8 * j
                d = 32 + 4 * (n & 7)
                for q in range(4):
                    a(f"v_cvt_pk_bf16_f32 v{d+q}, v{r+2*q}, v{r+2*q+1}")
                a(f"buffer_store_dwordx4 {vr(d,4)}, v{5+(c&1)}, s[12:15], 0 offen offset:{(2*tt+j)*640}")
                n += 1
    stamp(a, 2)
    stamp_flush(a, 0, 3, 12, "k1b")
    a("s_endpgm")
    a("k1_KV:")
    PK, PV = 32, 64
    for tt in range(2):
        for c in range(2):
            for q in range(8):
                r = ACC + (tt * NCT + c) * 16 + 2 * q
                phi_pair(a, r, 4 + 2 * (q & 1), PK + (tt * 2 + c) * 8 + q)
    for tt in range(2):
        for c in range(2):
            for q in range(8):
                r = ACC + (tt * NCT + 2 + c) * 16 + 2 * q
                a(f"v_cvt_pk_bf16_f32 v{PV+(tt*2+c)*8+q}, v{r}, v{r+1}")
    a(f"""s_mov_b32 s30, 0x10000000
          s_mov_b32 s31, 0x10000000
          s_mov_b64 exec, s[30:31]""")
    for tt in range(2):
        for q in range(8):
            a(f"v_mov_b32 v{PV+(tt*2+1)*8+q}, 0x3f803f80")
    a("s_mov_b64 exec, -1\ns_nop 3")
    for st in range(4):
        tt, j = st >> 1, st & 1
        for ka in range(2):
            for vb in range(2):
                d = vr(ACC + (ka * 2 + vb) * 16, 16)
                a(f"v_mfma_f32_32x32x16_bf16 {d}, {vr(PK+(tt*2+ka)*8+4*j,4)}, {vr(PV+(tt*2+vb)*8+4*j,4)}, {d if st else 0}")
    a(f"""v_and_b32 v1, 63, v0
          v_lshlrev_b32 v1, 4, v1
          s_lshl_b32 s30, s16, 14
          v_add_u32 v2, s30, v1
          s_lshl_b32 s30, s16, 12
          v_add_u32 v3, s30, v1
          s_barrier
          s_nop 7""")
    for t in range(16):
        a(f"ds_write_b128 v2, {vr(ACC+4*t,4)} offset:{t*1024}")
    a("s_waitcnt lgkmcnt(0)\ns_barrier")
    for w in range(4):
        for i in range(4):
            a(f"ds_read_b128 {vr(32+16*w+4*i,4)}, v3 offset:{w*16384+i*1024}")
    a(f"""s_and_b32 s30, s16, 1
          s_lshl_b32 s30, s30, 5
          v_and_b32 v1, 31, v0
          v_add_u32 v1, s30, v1
          v_mul_u32_u24 v2, 3277, v1
          v_lshrrev_b32 v2, 16, v2
          v_mul_u32_u24 v3, 20, v2
          v_sub_u32 v3, v1, v3
          v_cmp_eq_u32 s[32:33], 60, v1
          v_bfe_u32 v4, v0, 5, 1
          s_lshr_b32 s30, s16, 1
          s_lshl_b32 s30, s30, 3
          v_add_u32 v4, s30, v4
          v_cndmask_b32 v3, v3, 20, s[32:33]
          v_mul_u32_u24 v3, 80, v3
          s_lshl_b32 s30, s22, 5
          s_mul_i32 s31, s23, 3
          s_add_u32 s30, s30, s31
          s_mul_i32 s30, s30, 1680
          s_add_u32 s30, s30, {WS_KVP}
          v_add_u32 v3, s30, v3
          s_sub_u32 s34, 32, s31
          s_min_u32 s34, s34, 3
          s_mov_b32 s35, {1680-80}
          s_waitcnt lgkmcnt(0)""")
    for w in range(1, 4):
        for r in range(0, 16, 2):
            a(f"v_pk_add_f32 {vr(32+r,2)}, {vr(32+r,2)}, {vr(32+16*w+r,2)}")
    for i in range(4):
        a(f"""v_add_u32 v5, {2*i}, v4
              v_mul_u32_u24 v6, 205, v5
              v_lshrrev_b32 v6, 10, v6
              v_cmp_eq_u32 vcc, v6, v2
              v_cmp_gt_u32 s[36:37], s34, v6
              v_lshl_add_u32 v7, v5, 4, v3
              v_mad_u32_u24 v7, v6, s35, v7
              s_or_b64 vcc, vcc, s[32:33]
              s_and_b64 exec, vcc, s[36:37]
              buffer_store_dwordx4 {vr(32+4*i,4)}, v7, s[12:15], 0 offen
              s_mov_b64 exec, -1""")
    stamp(a, 2)
    stamp_flush(a, 0, 3, 12, "k1c")
    a("k1_exit:\ns_endpgm")
    gemm_loader(a, p, TM, NSL, 3840, 47, OPT["ld_aux1"])

def k3(a):
    TM, NCT, NSL = 128, 2, 4
    a(f"""s_cmp_ge_u32 s2, 160
          s_cbranch_scc1 k3_exit
          s_load_dwordx2 s[60:61], s[0:1], 16
          s_load_dwordx4 s[64:67], s[0:1], 40
          s_load_dwordx2 s[68:69], s[0:1], 64
          v_lshrrev_b32 v1, 6, v0
          s_and_b32 s17, s2, 7
          s_lshr_b32 s18, s2, 3
          v_readfirstlane_b32 s16, v1
          s_lshr_b32 s19, s17, 2
          s_and_b32 s20, s17, 3
          s_and_b32 s22, s18, 3
          s_lshr_b32 s23, s18, 2
          s_lshl_b32 s20, s20, 2
          s_add_u32 s22, s22, s20
          s_mul_i32 s24, s22, {128*1280}
          s_mul_i32 s26, s19, {SEC}
          s_add_u32 s24, s24, s26
          s_add_u32 s24, s24, {WS_OA}
          s_lshl_b32 s25, s23, 8""")
    stamp(a, 0)
    a(f"""s_waitcnt lgkmcnt(0)
          s_cmp_lg_u32 s19, 0
          s_cselect_b32 s60, s64, s60
          s_cselect_b32 s61, s65, s61""")
    srd(a, 4, 68, WS_SIZE + (0x400000 if OPT["stamps"] else 0))
    srd(a, 8, 60, 640*640*2)
    srd(a, 12, 66, 2048*1280*2)
    a(f"""s_cmp_ge_u32 s16, 4
          s_cbranch_scc1 k3_loader
          s_lshr_b32 s40, s16, 1
          s_lshl_b32 s40, s40, 6
          s_and_b32 s41, s16, 1
          s_lshl_b32 s41, s41, 1""")
    gemm_consumer_setup(a, TM, NCT)
    gemm_mainloop(a, "k3T", TM, NCT, NSL, False)
    stamp(a, 1)
    a(f"""v_and_b32 v1, 31, v0
          v_bfe_u32 v2, v0, 5, 1
          s_lshl_b32 s30, s22, 7
          s_add_u32 s30, s30, s40
          v_add_u32 v1, s30, v1
          v_mul_u32_u24 v1, 2560, v1
          v_lshl_add_u32 v1, v2, 4, v1
          s_mul_i32 s30, s19, 1280
          s_add_u32 s30, s30, s25
          s_lshl_b32 s31, s41, 6
          s_add_u32 s30, s30, s31
          v_add_u32 v1, s30, v1
          v_add_u32 v2, {32*2560}, v1""")
    n = 0
    for tt in range(2):
        for c in range(NCT):
            for pr in range(2):
                r = ACC + (tt * NCT + c) * 16 + 8 * pr
                d = 32 + 4 * (n & 7)
                for q in range(4):
                    a(f"v_cvt_pk_bf16_f32 v{d+q}, v{r+2*q}, v{r+2*q+1}")
                a(f"""s_nop 1
                      v_permlane32_swap_b32 v{d}, v{d+2}
                      v_permlane32_swap_b32 v{d+1}, v{d+3}
                      buffer_store_dwordx4 {vr(d,4)}, v{1+tt}, s[12:15], 0 offen offset:{c*64+pr*32}""")
                n += 1
    stamp(a, 2)
    stamp_flush(a, 2, 3, 4, "k3a")
    a("k3_exit:\ns_endpgm")
    gemm_loader(a, "k3", TM, NSL, 1280, 0, OPT["ld_aux3"])

VKM, VKT, VV, VD = 8, 9, 10, 11
QM, QT0, QT1 = 16, 20, 22
KM, KT, VA_, VB_, PA, PB = 24, 28, 32, 36, 40, 44
S0, S1, CR, OR_ = 48, 64, 80, 96
KVR, QB = 112, 124
SLOT = 24576
L_KV = 3 * SLOT + 256
L_FLAG = L_KV + 3072
K2_LDS = L_FLAG + 64

def k2_dma(a):
    for i in range(3):
        a(f"""s_add_u32 m0, s28, {i*1024}
              s_mov_b64 exec, s[{20+2*i}:{21+2*i}]
              buffer_load_dwordx4 v{VD+i}, s[4:7], s27 offen lds""")
    a(f"""s_mov_b64 exec, -1
          s_add_u32 s27, s27, 10240
          s_add_u32 s28, s28, {SLOT}
          s_cmp_ge_u32 s28, {3*SLOT}
          s_cselect_b32 s30, {3*SLOT}, 0
          s_sub_u32 s28, s28, s30""")

def qk(a_, S, tpar, C):
    return [f"v_mfma_f32_32x32x16_bf16 {vr(S,16)}, {vr(KM,4)}, {vr(QM,4)}, {C}",
            f"v_mfma_f32_32x32x8_bf16 {vr(S,16)}, {vr(KT,2)}, {vr(QT1 if tpar else QT0,2)}, {vr(S,16)}"]

def norm_store(a, O, addr, eps):
    a(f"""v_mov_b32 v2, v{O+8}
          v_mov_b32 v3, v{O+8}
          s_nop 1
          v_permlane32_swap_b32 v2, v3""")
    if eps: a(f"s_nop 0\nv_add_f32 v3, s52, v3")
    a(f"""s_nop 0
          v_rcp_f32 v4, v3
          s_nop 0""")
    for r in range(12):
        a(f"v_mul_f32 v{O+r}, v4, v{O+r}")
    for q in range(6):
        a(f"v_cvt_pk_bf16_f32 v{O+q}, v{O+2*q}, v{O+2*q+1}")
    a(f"""buffer_store_dwordx2 {vr(O,2)}, v{addr}, s[4:7], 0 offen
          buffer_store_dwordx2 {vr(O+2,2)}, v{addr}, s[4:7], 0 offen offset:16
          s_mov_b64 exec, s[34:35]
          buffer_store_dwordx2 {vr(O+4,2)}, v{addr}, s[4:7], 0 offen offset:32
          s_mov_b64 exec, -1""")

def k2(a):
    a(f"""s_cmp_ge_u32 s2, 256
          s_cbranch_scc1 k2_exit
          s_load_dwordx2 s[8:9], s[0:1], 64
          v_lshrrev_b32 v1, 6, v0
          s_and_b32 s17, s2, 7
          s_lshr_b32 s18, s2, 3
          v_readfirstlane_b32 s16, v1
          s_lshl_b32 s17, s17, 2
          s_and_b32 s19, s18, 3
          s_add_u32 s17, s17, s19
          s_lshr_b32 s18, s18, 2
          s_mul_i32 s19, s17, {HS}""")
    stamp(a, 0)
    a(f"""v_and_b32 v1, 63, v0
          v_and_b32 v2, 31, v1
          v_lshrrev_b32 v3, 5, v1
          s_mov_b32 s34, -1
          s_mov_b32 s35, 0
          s_mov_b32 s36, 0
          s_mov_b32 s37, -1
          s_mov_b32 s38, 0x1fffff
          s_mov_b32 s39, 0x1fffff
          s_mov_b32 s40, 0x1fffff
          s_mov_b32 s41, 0
          s_mov_b32 s50, {fbits(LOG2E)}
          s_mov_b32 s51, {fbits(LOG2E)}
          s_mov_b32 s52, {fbits(1e-6)}
          s_mov_b32 s53, 0
          v_mul_u32_u24 v{VKM}, 48, v2
          v_lshl_add_u32 v{VKM}, v3, 4, v{VKM}
          v_mul_u32_u24 v{VKT}, 48, v1
          v_add_u32 v{VKT}, 32, v{VKT}
          v_mul_u32_u24 v{VV}, 384, v3
          v_lshl_add_u32 v{VV}, v2, 4, v{VV}
          v_add_u32 v{VV}, 12288, v{VV}
          s_lshl_b32 s30, s18, 8
          s_lshl_b32 s31, s16, 5
          s_add_u32 s30, s30, s31
          v_add_u32 v4, s30, v2
          v_mul_u32_u24 v14, 1280, v4
          v_lshl_add_u32 v14, v3, 3, v14
          s_mul_i32 s31, s17, 40
          s_add_u32 s31, s31, {WS_OA}
          v_add_u32 v14, s31, v14
          v_mul_u32_u24 v4, 40, v4
          v_add_u32 v4, s19, v4
          v_lshl_add_u32 v5, v3, 4, v4
          v_lshl_add_u32 v6, v3, 3, v4
          v_mul_u32_u24 v7, 80, v2
          v_lshl_add_u32 v7, v3, 4, v7
          s_lshl_b32 s30, s16, 5
          s_add_u32 s30, s30, s17
          s_mul_i32 s30, s30, 1680
          s_add_u32 s43, s30, {WS_KVP}
          s_mov_b32 s44, {12288+320}""")
    for r in range(12): a(f"v_mov_b32 v{KVR+r}, 0")
    a("s_waitcnt lgkmcnt(0)")
    srd(a, 4, 8, WS_SIZE + (0x400000 if OPT["stamps"] else 0))
    a(f"""s_mov_b32 s31, {WS_QB}
          buffer_load_dwordx4 {vr(QM,4)}, v5, s[4:7], 0 offen
          buffer_load_dwordx2 {vr(QT0,2)}, v4, s[4:7], 0 offen offset:32""")
    a(f"""s_cmp_ge_u32 s16, 4
          s_cbranch_scc1 k2_vsetup
          s_mul_i32 s32, s16, {64*40}
          s_add_u32 s27, s19, {WS_KA}
          s_add_u32 s27, s27, s32""")
    for i in range(3):
        a(f"""v_add_u32 v15, {64*i}, v1
              v_mul_u32_u24 v{VD+i}, 21846, v15
              v_lshrrev_b32 v{VD+i}, 16, v{VD+i}
              v_mul_u32_u24 v2, 8, v{VD+i}
              v_lshlrev_b32 v{VD+i}, 4, v15
              v_sub_u32 v{VD+i}, v{VD+i}, v2
              s_mov_b64 s[{20+2*i}:{21+2*i}], -1""")
    a(f"""s_branch k2_dsetup_done
          k2_vsetup:
          s_sub_u32 s32, s16, 4
          s_mul_i32 s32, s32, {8*320}
          s_add_u32 s27, s19, {WS_VA}
          s_add_u32 s27, s27, s32""")
    for i in range(3):
        m = 0
        for l in range(64):
            if (64 * i + l) % 24 < 20: m |= 1 << l
        a(f"""v_add_u32 v15, {64*i}, v1
              v_mul_u32_u24 v{VD+i}, 2731, v15
              v_lshrrev_b32 v{VD+i}, 16, v{VD+i}
              v_lshlrev_b32 v2, 6, v{VD+i}
              v_lshlrev_b32 v{VD+i}, 4, v15
              v_sub_u32 v{VD+i}, v{VD+i}, v2
              s_mov_b32 s{20+2*i}, {m & 0xffffffff}
              s_mov_b32 s{21+2*i}, {m >> 32}""")
    a(f"""k2_dsetup_done:
          s_mov_b32 s26, s27
          s_mul_i32 s29, s16, 3072
          s_mov_b32 s28, s29""")
    k2_dma(a)
    a(f"""s_mov_b64 exec, s[38:39]
          buffer_load_dwordx4 {vr(KVR,4)}, v7, s[4:7], s43 offen
          buffer_load_dwordx4 {vr(KVR+4,4)}, v7, s[4:7], s43 offen offset:32
          s_mov_b64 exec, s[40:41]
          buffer_load_dwordx4 {vr(KVR+8,4)}, v7, s[4:7], s43 offen offset:64
          s_mov_b64 exec, -1
          buffer_load_dwordx2 {vr(QB,2)}, v6, s[4:7], s31 offen
          buffer_load_dwordx2 {vr(QB+2,2)}, v6, s[4:7], s31 offen offset:16
          buffer_load_dwordx2 {vr(QB+4,2)}, v4, s[4:7], s31 offen offset:32""")
    k2_dma(a)
    a(f"""v_lshrrev_b32 v2, 5, v0
          v_mul_u32_u24 v2, {SLOT - 32*384}, v2
          v_mul_u32_u24 v15, 384, v0
          v_add3_u32 v2, v2, v15, s44
          v_mov_b32 v{PA}, 0x3f803f80
          v_mov_b32 v{PA+1}, 0x3f803f80
          v_mov_b32 v{PA+2}, 0x3f803f80
          v_mov_b32 v{PA+3}, 0x3f803f80
          v_cmp_gt_u32 vcc, 96, v0
          s_and_saveexec_b64 s[32:33], vcc
          ds_write_b128 v2, {vr(PA,4)}
          s_mov_b64 exec, -1
          v_lshlrev_b32 v2, 3, v0
          v_add_u32 v2, {L_KV}, v2
          v_mov_b32 v{PB}, 0
          v_mov_b32 v{PB+1}, 0
          v_cmp_gt_u32 vcc, {(3072+64)//8}, v0
          s_and_saveexec_b64 s[32:33], vcc
          ds_write_b64 v2, {vr(PB,2)}
          s_mov_b64 exec, -1""")
    a(f"""k2_restart:
          s_waitcnt vmcnt(3) lgkmcnt(0)
          s_barrier""")
    stamp(a, 1)
    a(f"""ds_read_b128 {vr(KM,4)}, v{VKM}
          ds_read_b64 {vr(KT,2)}, v{VKT}
          s_cmp_lg_u32 s53, 0
          s_cbranch_scc1 k2_havemax
          v_mov_b32 v{QT1}, v{QT0}
          v_mov_b32 v{QT1+1}, v{QT0+1}
          s_mov_b64 exec, s[36:37]
          v_mov_b32 v{QT0}, 0
          v_mov_b32 v{QT0+1}, 0
          s_mov_b64 exec, s[34:35]
          v_mov_b32 v{QT1}, 0
          v_mov_b32 v{QT1+1}, 0
          s_mov_b64 exec, -1
          v_and_b32 v2, 63, v0
          v_lshlrev_b32 v15, 2, v2
          v_add_u32 v15, {L_KV}, v15
          s_waitcnt lgkmcnt(0)""")
    for m in qk(a, S0, 0, "0"): a(m)
    for r in range(12):
        a(f"ds_add_f32 v15, v{KVR+r} offset:{256*r}")
    a("s_nop 1")
    a(f"v_max3_f32 v2, v{S0}, v{S0+1}, v{S0+2}")
    for r in range(3, 15, 2):
        a(f"v_max3_f32 v2, v2, v{S0+r}, v{S0+r+1}")
    a(f"""v_max_f32 v2, v2, v{S0+15}
          k2_setmax:
          v_mov_b32 v3, v2
          s_nop 1
          v_permlane32_swap_b32 v2, v3
          s_nop 1
          v_max_f32 v2, v2, v3
          v_sub_f32 v2, 0, v2""")
    for r in range(16): a(f"v_mov_b32 v{CR+r}, v2")
    a(f"""s_cmp_lg_u32 s53, 0
          s_cbranch_scc1 k2_restart
          k2_havemax:
          s_waitcnt lgkmcnt(0)""")
    for m in qk(a, S0, 0, vr(CR, 16)): a(m)
    a(f"ds_read_b128 {vr(KM,4)}, v{VKM} offset:1536")
    for r in range(16): a(f"v_mov_b32 v{OR_+r}, 0")
    for r in range(4): a(f"v_mov_b32 v{PB+r}, 0\nv_mov_b32 v{VB_+r}, 0")
    a(f"""ds_read_b32 v2, v{VKM}
          s_mov_b32 s45, 0
          s_mov_b32 s46, 0
          s_mov_b32 s48, {SLOT}
          k2_loop:
          s_add_u32 s46, s46, 1
          s_cmp_eq_u32 s46, 3
          s_cselect_b32 s47, {(-2*SLOT) & 0xffffffff}, s48
          s_cselect_b32 s46, 0, s46""")
    for t in range(8):
        cur, nxt = (S0, S1) if t % 2 == 0 else (S1, S0)
        m = qk(a, nxt, (t + 1) & 1, vr(CR, 16))
        e = lambda i: f"v_exp_f32 v{cur+i}, v{cur+i}"
        c = lambda i: f"v_cvt_pk_bf16_f32 v{(PA if i < 4 else PB - 4) + i}, v{cur+2*i}, v{cur+2*i+1}"
        a("s_waitcnt lgkmcnt(1)")
        a(m[0])
        if t == 6:
            a(f"""s_waitcnt vmcnt(0)
                  s_barrier
                  v_add_u32 v{VKM}, s47, v{VKM}
                  v_add_u32 v{VKT}, s47, v{VKT}""")
        a(f"ds_read_b128 {vr(KM,4)}, v{VKM} offset:{((t+2)&7)*1536}")
        a(f"ds_read_b128 {vr(VA_,4)}, v{VV} offset:{t*1536}")
        if t == 6:
            a(f"s_cmp_ge_u32 s45, 6\ns_cbranch_scc1 k2_nodma")
            k2_dma(a)
            a("k2_nodma:")
        for x in (e(0), e(1), e(2), e(3), c(0), c(1)): a(x)
        a(m[1])
        kt = (t + 1) & 1
        if kt: a(f"ds_read_b64 {vr(KT,2)}, v{VKT} offset:{(((t+2)//2)&3)*3072}")
        for x in (e(4), e(5), e(6), e(7), c(2), c(3)): a(x)
        a(f"s_waitcnt lgkmcnt({2+kt})")
        a(f"v_mfma_f32_32x32x16_bf16 {vr(OR_,16)}, {vr(VB_,4)}, {vr(PB,4)}, {vr(OR_,16)}")
        a(f"ds_read_b128 {vr(VB_,4)}, v{VV} offset:{t*1536+768}")
        for x in (e(8), e(9), e(10), e(11), c(4), c(5)): a(x)
        a(f"s_waitcnt lgkmcnt({1+kt})")
        a(f"v_mfma_f32_32x32x16_bf16 {vr(OR_,16)}, {vr(VA_,4)}, {vr(PA,4)}, {vr(OR_,16)}")
        for x in (e(12), e(13), e(14), e(15), c(6), c(7)): a(x)
    a(f"""v_add_u32 v{VV}, s47, v{VV}
          s_add_u32 s45, s45, 1
          s_cmp_lt_u32 s45, 8
          s_cbranch_scc1 k2_loop
          s_waitcnt lgkmcnt(0)
          v_mfma_f32_32x32x16_bf16 {vr(OR_,16)}, {vr(VB_,4)}, {vr(PB,4)}, {vr(OR_,16)}""")
    stamp(a, 2)
    a(f"""v_subrev_u32 v{VKM}, {2*SLOT}, v{VKM}
          v_subrev_u32 v{VKT}, {2*SLOT}, v{VKT}
          v_subrev_u32 v{VV}, {2*SLOT}, v{VV}
          s_cmp_lg_u32 s53, 0
          s_cbranch_scc1 k2_final""")
    for r in range(12):
        a(f"ds_read_b32 v{KVR+r}, v15 offset:{256*r}")
    for q in range(6):
        a(f"v_lshlrev_b32 v{S1+2*q}, 16, v{QB+q}\nv_and_b32 v{S1+2*q+1}, 0xffff0000, v{QB+q}")
    for q in range(6):
        phi_pair(a, S1 + 2 * q, 4 + 2 * (q & 1), QB + q)
    a(f"""s_mov_b64 exec, s[36:37]
          v_mov_b32 v{QB+4}, 0
          v_mov_b32 v{QB+5}, 0
          s_mov_b64 exec, -1
          s_waitcnt lgkmcnt(0)""")
    for q in range(6):
        a(f"v_cvt_pk_bf16_f32 v{KVR+q}, v{KVR+2*q}, v{KVR+2*q+1}")
    a(f"""s_nop 1
          v_mfma_f32_32x32x16_bf16 {vr(S0,16)}, {vr(KVR,4)}, {vr(QB,4)}, 0
          v_mfma_f32_32x32x8_bf16 {vr(S0,16)}, {vr(KVR+4,2)}, {vr(QB+4,2)}, {vr(S0,16)}""")
    norm_store(a, OR_, 14, False)
    a(f"""s_mov_b32 s30, {fbits(2.0**40)}
          v_cmp_nle_f32 vcc, v3, s30
          v_add_u32 v5, {WS_OB-WS_OA}, v14
          s_cmp_eq_u64 vcc, 0
          s_cbranch_scc1 k2_ok
          v_mov_b32 v6, {L_FLAG}
          v_mov_b32 v7, 1
          ds_write_b32 v6, v7
          k2_ok:""")
    norm_store(a, S0, 5, True)
    stamp(a, 3)
    stamp_flush(a, 1, 4, 4, "k2a")
    a(f"""v_mov_b32 v6, {L_FLAG}
          s_waitcnt lgkmcnt(0)
          s_barrier
          ds_read_b32 v7, v6
          s_waitcnt lgkmcnt(0)
          v_readfirstlane_b32 s30, v7
          s_nop 3
          s_cmp_eq_u32 s30, 0
          s_cbranch_scc1 k2_exit""")
    a(f"""s_mov_b32 s53, 1
          s_mov_b32 s27, s26
          s_mov_b32 s45, 0
          v_mov_b32 v2, 0xff800000
          k2_mx_loop:
          s_mov_b32 s28, s29""")
    k2_dma(a)
    a(f"""s_waitcnt vmcnt(0)
          s_barrier
          s_mov_b32 s46, 0
          v_mov_b32 v5, v{VKM}
          v_mov_b32 v6, v{VKT}
          k2_mx_pair:
          ds_read_b128 {vr(KM,4)}, v5
          ds_read_b128 {vr(VA_,4)}, v5 offset:1536
          ds_read_b64 {vr(KT,2)}, v6
          s_waitcnt lgkmcnt(0)""")
    for m in qk(a, S0, 0, "0"): a(m)
    for m in qk(a, S1, 1, "0"): a(m.replace(vr(KM,4), vr(VA_,4)))
    a(f"""v_add_u32 v5, 3072, v5
          v_add_u32 v6, 3072, v6
          s_nop 7
          s_nop 3""")
    for r in range(0, 32, 2):
        a(f"v_max3_f32 v2, v2, v{S0+r}, v{S0+r+1}")
    a(f"""s_add_u32 s46, s46, 1
          s_cmp_lt_u32 s46, 4
          s_cbranch_scc1 k2_mx_pair
          s_barrier
          s_add_u32 s45, s45, 1
          s_cmp_lt_u32 s45, 8
          s_cbranch_scc1 k2_mx_loop
          s_mov_b32 s27, s26
          s_mov_b32 s28, s29""")
    k2_dma(a)
    k2_dma(a)
    a(f"""s_branch k2_setmax
          k2_final:
          s_nop 7""")
    norm_store(a, OR_, 14, False)
    a("k2_exit:\ns_endpgm")

HEADER = open("cdna_kernels/" + NAME + ".s.ref").read().split("; Override launch")[0]

def build():
    kernels = [("k1_qkv_kernel", k1, 256, 512, 3 * (256 * 128 + 16384), 256),
               ("k2_attn_kernel", k2, 256, 512, K2_LDS, 136),
               ("k3_proj_kernel", k3, 160, 512, 4 * (128 * 128 + 16384), 192)]
    out = HEADER
    for n, f, g, b, lds, nv in kernels:
        out += f"; @launch kernel={n} grid=({g},1,1) block=({b},1,1) lds={lds}\n"
    out += '.amdgcn_target "amdgcn-amd-amdhsa--gfx950"\n.text\n'
    for n, f, g, b, lds, nv in kernels:
        a = Asm(); f(a)
        body = a.text()
        for h in check_hazards(body): print(n, h, file=sys.stderr)
        out += f".globl {n}\n.p2align 8\n.type {n},@function\n{n}:\n" + body
    out += '.section .rodata,"a"\n'
    for n, f, g, b, lds, nv in kernels:
        out += f""".p2align 6
.amdhsa_kernel {n}
  .amdhsa_next_free_vgpr {nv}
  .amdhsa_next_free_sgpr 102
  .amdhsa_accum_offset {(nv+3)//4*4}
  .amdhsa_group_segment_fixed_size 0
  .amdhsa_kernarg_size 72
  .amdhsa_user_sgpr_count 2
  .amdhsa_user_sgpr_kernarg_segment_ptr 1
  .amdhsa_system_sgpr_workgroup_id_x 1
.end_amdhsa_kernel
"""
    return out

if __name__ == "__main__":
    outp = "cdna_kernels/" + NAME + ".s"
    for arg in sys.argv[1:]:
        if "=" in arg:
            k, v = arg.split("=", 1)
            if k == "out": outp = v
            else: OPT[k] = (v == "1") if isinstance(OPT.get(k), bool) else v
    open(outp, "w").write(build())
```

```python
import struct, sys, math
from asmlib import Asm, vr, sr, check_hazards

NAME = "concat_heads__mha_block__linear_attn_block__prompt"
def fbits(x): return struct.unpack("<I", struct.pack("<f", x))[0]
LOG2E = math.log2(math.e)
QSCALE = LOG2E / math.sqrt(20.0)

SEC = 0x280000
WS_QA, WS_KA, WS_VA, WS_QB, WS_KVP, WS_OA, WS_OB = 0, SEC, 2*SEC, 3*SEC, 4*SEC, 6*SEC, 7*SEC
WS_SIZE = 8 * SEC
HS = 81920

OPT = dict(ld_aux1="", ld_aux3="", stamps=False, clk=False, k2_nodma=False, k2_nobar=False, k2_zero=False, empties='0')

def srd(a, d, lo, size):
    a(f"""s_mov_b32 s{d}, s{lo}
          s_and_b32 s{d+1}, s{lo+1}, 0xffff
          s_mov_b32 s{d+2}, {size}
          s_mov_b32 s{d+3}, 0x20000""")

def stamp(a, idx):
    if not OPT["stamps"]: return
    a(f"{'s_memtime' if OPT['clk'] else 's_memrealtime'} s[{74+2*idx}:{75+2*idx}]")

def stamp_flush(a, kidx, n, wsreg, lbl):
    if not OPT["stamps"]: return
    a(f"""s_waitcnt lgkmcnt(0)
          s_lshl_b32 s88, s2, 4
          s_add_u32 s88, s88, s16
          s_lshl_b32 s88, s88, 5
          s_add_u32 s88, s88, {WS_SIZE + kidx*0x40000}
          s_mov_b64 exec, 1
          v_mov_b32 v1, s88""")
    for i in range(n):
        a(f"v_mov_b32 v2, s{74+2*i}\nbuffer_store_dword v2, v1, s[{wsreg}:{wsreg+3}], 0 offen offset:{4*i}")
    a("s_mov_b64 exec, -1")

XA, WA = 16, 20
FR = 32
ACC = 128

def gemm_loader(a, p, TM, nslots, pitch, kvflag, aux):
    NX = TM // 32
    SB = TM * 128 + 16384
    per = NX + 4
    a(f"""{p}_loader:
          v_and_b32 v1, 63, v0
          v_lshrrev_b32 v2, 3, v1
          v_mul_u32_u24 v2, 1280, v2
          v_lshrrev_b32 v3, 4, v1
          v_and_b32 v4, 7, v1
          v_xor_b32 v4, v4, v3
          v_lshl_add_u32 v8, v4, 4, v2
          v_xor_b32 v9, 64, v8
          v_and_b32 v4, 15, v1
          v_lshlrev_b32 v5, 2, v3
          v_xor_b32 v4, v4, v5
          v_mul_u32_u24 v2, {pitch}, v3
          v_lshl_add_u32 v10, v4, 4, v2""")
    if kvflag:
        a(f"""v_lshrrev_b32 v4, 3, v4
              v_mul_u32_u24 v4, s{kvflag}, v4
              v_add_u32 v10, v10, v4""")
    a(f"""s_sub_u32 s30, s16, 4
          s_mul_i32 s31, s30, {NX*8*1280}
          s_add_u32 s24, s24, s31
          s_mul_i32 s31, s30, {16*pitch}
          s_add_u32 s25, s25, s31
          s_mul_i32 s32, s30, {NX*1024}
          s_lshl_b32 s33, s30, 12
          s_add_u32 s33, s33, {TM*128}
          s_mov_b32 s34, 0
          s_mov_b32 s35, 0
          {p}_ld_loop:
          s_cmp_lt_u32 s34, {nslots}
          s_cbranch_scc1 {p}_ld_issue
          s_cmp_lg_u32 s34, {nslots}
          s_cbranch_scc1 {p}_ld_w
          s_waitcnt vmcnt({min(63, per*(nslots-1))})
          s_barrier
          {p}_ld_w:
          s_waitcnt vmcnt({per*(nslots-2)})
          s_barrier
          {p}_ld_issue:
          s_add_u32 s36, s35, s32
          s_add_u32 s37, s35, s33""")
    for i in range(NX):
        a(f"""s_add_u32 m0, s36, {i*1024}
              s_add_u32 s38, s24, {i*8*1280}
              buffer_load_dwordx4 v{8+(i&1)}, s[4:7], s38 offen {aux} lds""")
    for i in range(4):
        a(f"""s_add_u32 m0, s37, {i*1024}
              s_add_u32 s38, s25, {i*4*pitch}
              buffer_load_dwordx4 v10, s[8:11], s38 offen {aux} lds""")
    a(f"""s_add_u32 s24, s24, 128
          s_add_u32 s25, s25, {64*pitch}
          s_add_u32 s35, s35, {SB}
          s_cmp_eq_u32 s35, {SB*nslots}
          s_cselect_b32 s35, 0, s35
          s_add_u32 s34, s34, 1
          s_cmp_lt_u32 s34, 10
          s_cbranch_scc1 {p}_ld_loop""")
    for r in range(nslots - 2, -1, -1):
        a(f"s_waitcnt vmcnt({per*r})\ns_barrier")
    a("s_endpgm")

def gemm_consumer_setup(a, TM, NCT):
    a(f"""v_and_b32 v1, 63, v0
          v_and_b32 v2, 31, v1
          v_lshrrev_b32 v3, 5, v1
          v_add_u32 v4, s40, v2
          v_lshrrev_b32 v5, 1, v4
          v_and_b32 v5, 7, v5
          v_xor_b32 v5, v5, v3
          v_lshlrev_b32 v4, 7, v4
          v_lshl_add_u32 v{XA}, v5, 4, v4
          v_xor_b32 v{XA+1}, 32, v{XA}
          v_xor_b32 v{XA+2}, 64, v{XA}
          v_xor_b32 v{XA+3}, 0x60, v{XA}
          v_and_b32 v4, 15, v1
          v_lshrrev_b32 v5, 2, v4
          v_lshl_add_u32 v6, v3, 3, v5
          v_lshlrev_b32 v6, 8, v6
          v_bfe_u32 v7, v1, 4, 1
          v_lshlrev_b32 v7, 1, v7
          v_bfe_u32 v8, v1, 1, 1
          v_add_u32 v7, v7, v8
          v_lshlrev_b32 v5, 2, v5
          v_xor_b32 v7, v7, v5
          v_lshl_add_u32 v6, v7, 4, v6
          v_and_b32 v7, 1, v1
          v_lshl_add_u32 v6, v7, 3, v6
          v_add_u32 v6, {TM*128}, v6
          s_lshl_b32 s42, s41, 6
          v_xor_b32 v{WA}, s42, v6""")
    for c in range(1, NCT):
        a(f"v_xor_b32 v{WA+c}, {c*64}, v{WA}")
    for r in range(2 * NCT * 16):
        a(f"v_mov_b32 v{ACC+r}, 0")

def gemm_reads(NCT, buf, ks):
    b = FR + 24 * buf
    o = [f"ds_read_b128 {vr(b+4*tt,4)}, v{XA+ks} offset:{tt*4096}" for tt in range(2)]
    for c in range(NCT):
        for u in range(2):
            o.append(f"ds_read_b64_tr_b16 {vr(b+8+4*c+2*u,2)}, v{WA+c} offset:{ks*4096+u*1024}")
    return o

def gemm_mainloop(a, p, TM, NCT, nslots, orientF):
    SB = TM * 128 + 16384
    a(f"s_mov_b32 s43, 0\ns_mov_b32 s44, 0\ns_mov_b32 s48, {SB}\ns_barrier")
    for r in gemm_reads(NCT, 0, 0): a(r)
    a(f"{p}_loop:")
    nm = 2 * NCT
    for ks in range(4):
        b = FR + 24 * (ks & 1)
        mf = []
        for c in range(NCT):
            for tt in range(2):
                d = vr(ACC + (tt * NCT + c) * 16, 16)
                xf, wf = vr(b + 4 * tt, 4), vr(b + 8 + 4 * c, 4)
                A, B = (xf, wf) if orientF else (wf, xf)
                mf.append(f"v_mfma_f32_32x32x16_bf16 {d}, {A}, {B}, {d}")
        rd = gemm_reads(NCT, (ks + 1) & 1, (ks + 1) & 3)
        a("s_waitcnt lgkmcnt(0)")
        per = -(-len(rd) // (nm - 1)) if NCT == 2 else 2
        for i, m in enumerate(mf):
            a(m)
            if ks == 3 and i == 0:
                a(f"""s_add_u32 s44, s44, 1
                      s_cmp_eq_u32 s44, {nslots}
                      s_cselect_b32 s45, {(-(nslots-1)*SB) & 0xffffffff}, s48
                      s_cselect_b32 s44, 0, s44
                      s_cmp_eq_u32 s43, 9
                      s_cbranch_scc1 {p}_nobar
                      s_barrier
                      {p}_nobar:""")
                for r in list(range(XA, XA + 4)) + list(range(WA, WA + NCT)):
                    a(f"v_add_u32 v{r}, s45, v{r}")
            for r in rd[i * per:(i + 1) * per]: a(r)
    a(f"""s_add_u32 s43, s43, 1
          s_cmp_lt_u32 s43, 10
          s_cbranch_scc1 {p}_loop
          s_waitcnt lgkmcnt(0)
          s_nop 7
          s_nop 3""")

def phi_pair(a, r, t, dst):
    a(f"""v_pk_mul_f32 {vr(t,2)}, {vr(r,2)}, s[50:51]
          v_max_f32 v{r}, s52, v{r}
          v_exp_f32_e64 v{t}, v{t} clamp
          v_exp_f32_e64 v{t+1}, v{t+1} clamp
          v_max_f32 v{r+1}, s52, v{r+1}
          v_pk_add_f32 {vr(r,2)}, {vr(r,2)}, {vr(t,2)}
          v_cvt_pk_bf16_f32 v{dst}, v{r}, v{r+1}""")

def k1(a):
    p = "k1"
    TM, NCT, NSL = 256, 4, 3
    a(f"""s_cmp_ge_u32 s2, 256
          s_cbranch_scc1 k1_exit
          s_load_dwordx4 s[60:63], s[0:1], 0
          s_load_dwordx4 s[64:67], s[0:1], 24
          s_load_dwordx2 s[68:69], s[0:1], 64
          v_lshrrev_b32 v1, 6, v0
          s_and_b32 s17, s2, 7
          s_lshr_b32 s18, s2, 3
          v_readfirstlane_b32 s16, v1
          s_lshr_b32 s19, s17, 2
          s_and_b32 s20, s17, 1
          s_bfe_u32 s21, s17, 0x10001
          s_and_b32 s22, s18, 3
          s_lshr_b32 s23, s18, 2
          s_lshl_b32 s26, s21, 3
          s_add_u32 s23, s23, s26""")
    a(f"""s_cmp_lg_u32 s19, 0
          s_cbranch_scc1 k1_dec
          s_cmp_lt_u32 s18, 28
          s_cbranch_scc1 k1_dec
          s_cmp_ge_u32 s18, 30
          s_cbranch_scc1 k1_exit
          s_sub_u32 s22, s18, 28
          s_lshl_b32 s26, s21, 1
          s_add_u32 s22, s22, s26
          s_mov_b32 s23, 7
          k1_dec:
          s_lshl_b32 s20, s20, 2
          s_add_u32 s22, s22, s20
          s_mul_i32 s24, s22, {256*1280}
          s_lshl_b32 s25, s23, 8
          s_mul_i32 s26, s23, 52
          s_lshr_b32 s26, s26, 8
          s_mul_i32 s27, s26, 5
          s_sub_u32 s27, s23, s27
          s_lshl_b32 s27, s27, 7
          s_mov_b32 s46, 0
          s_mov_b32 s47, 0
          s_cmp_eq_u32 s26, 2
          s_cselect_b32 s46, 1, 0
          s_mul_i32 s28, s26, {SEC}
          s_cmp_lg_u32 s19, 0
          s_cbranch_scc0 k1_dec2
          s_mov_b32 s28, {WS_QB}
          s_mov_b32 s46, 0
          s_cmp_lt_u32 s23, 5
          s_cbranch_scc1 k1_dec2
          s_mov_b32 s46, 2
          s_mov_b32 s47, 1152
          s_sub_u32 s23, s23, 5
          s_mul_i32 s25, s23, 120
          s_add_u32 s25, s25, 1280
          k1_dec2:""")
    stamp(a, 0)
    a(f"""s_waitcnt lgkmcnt(0)
          s_cmp_lg_u32 s19, 0
          s_cselect_b32 s60, s64, s60
          s_cselect_b32 s61, s65, s61
          s_cselect_b32 s62, s66, s62
          s_cselect_b32 s63, s67, s63""")
    srd(a, 4, 60, 2048*640*2)
    srd(a, 8, 62, 640*1920*2)
    srd(a, 12, 68, WS_SIZE + (0x400000 if OPT["stamps"] else 0))
    a(f"""s_cmp_ge_u32 s16, 4
          s_cbranch_scc1 k1_loader
          s_lshl_b32 s40, s16, 6
          s_mov_b32 s41, 0""")
    gemm_consumer_setup(a, TM, NCT)
    a(f"""s_mov_b32 s50, {fbits(LOG2E)}
          s_mov_b32 s51, {fbits(LOG2E)}
          s_mov_b32 s52, {fbits(1e-6)}
          s_cmp_lg_u32 s46, 0
          s_cbranch_scc1 k1_F""")
    gemm_mainloop(a, "k1T", TM, NCT, NSL, False)
    stamp(a, 1)
    a(f"""s_add_u32 s30, s19, s26
          s_cmp_eq_u32 s30, 0
          s_cselect_b32 s54, {fbits(QSCALE)}, 1.0
          s_mov_b32 s55, s54
          s_mov_b32 s56, {HS-40}
          v_and_b32 v1, 31, v0
          v_bfe_u32 v2, v0, 5, 1
          s_lshl_b32 s30, s22, 8
          s_add_u32 s30, s30, s40
          v_add_u32 v1, s30, v1
          v_mul_u32_u24 v1, 40, v1
          v_lshl_add_u32 v1, v2, 3, v1
          s_lshl_b32 s31, s27, 1
          s_add_u32 s31, s31, s28
          v_add_u32 v1, s31, v1
          s_lshr_b32 s31, s27, 2
          v_add_u32 v2, s31, v2
          v_mul_u32_u24 v2, 205, v2""")
    n = 0
    for c in range(NCT):
        for i in range(4):
            g = 8 * c + 2 * i
            ad = 4 + (n & 1)
            a(f"""v_add_u32 v3, {g*205}, v2
                  v_lshrrev_b32 v3, 10, v3
                  v_mad_u32_u24 v{ad}, v3, s56, v1""")
            for tt in range(2):
                r = ACC + (tt * NCT + c) * 16 + 4 * i
                d = 32 + 2 * ((2 * n + tt) & 7)
                a(f"""v_pk_mul_f32 {vr(r,2)}, {vr(r,2)}, s[54:55]
                      v_pk_mul_f32 {vr(r+2,2)}, {vr(r+2,2)}, s[54:55]
                      v_cvt_pk_bf16_f32 v{d}, v{r}, v{r+1}
                      v_cvt_pk_bf16_f32 v{d+1}, v{r+2}, v{r+3}
                      buffer_store_dwordx2 {vr(d,2)}, v{ad}, s[12:15], 0 offen offset:{g*8+tt*1280}""")
            n += 1
    stamp(a, 2)
    stamp_flush(a, 0, 3, 12, "k1a")
    a("s_endpgm")
    a("k1_F:")
    gemm_mainloop(a, "k1F", TM, NCT, NSL, True)
    stamp(a, 1)
    a(f"""s_cmp_eq_u32 s46, 2
          s_cbranch_scc1 k1_KV
          s_mov_b32 s56, {HS-320}
          v_and_b32 v1, 31, v0
          v_bfe_u32 v2, v0, 5, 1
          v_add_u32 v1, s27, v1
          v_mul_u32_u24 v2, 320, v2
          s_lshl_b32 s30, s22, 4
          s_lshl_b32 s31, s16, 2
          s_add_u32 s30, s30, s31
          s_mul_i32 s30, s30, 640
          s_add_u32 s30, s30, s28
          v_add_u32 v2, s30, v2""")
    n = 0
    for c in range(NCT):
        a(f"""v_add_u32 v3, {32*c}, v1
              v_lshl_add_u32 v4, v3, 4, v2
              v_mul_u32_u24 v3, 3277, v3
              v_lshrrev_b32 v3, 16, v3
              v_mad_u32_u24 v{5+(c&1)}, v3, s56, v4""")
        for tt in range(2):
            for j in range(2):
                r = ACC + (tt * NCT + c) * 16 + 8 * j
                d = 32 + 4 * (n & 7)
                for q in range(4):
                    a(f"v_cvt_pk_bf16_f32 v{d+q}, v{r+2*q}, v{r+2*q+1}")
                a(f"buffer_store_dwordx4 {vr(d,4)}, v{5+(c&1)}, s[12:15], 0 offen offset:{(2*tt+j)*640}")
                n += 1
    stamp(a, 2)
    stamp_flush(a, 0, 3, 12, "k1b")
    a("s_endpgm")
    a("k1_KV:")
    PK, PV = 32, 64
    for tt in range(2):
        for c in range(2):
            for q in range(8):
                r = ACC + (tt * NCT + c) * 16 + 2 * q
                phi_pair(a, r, 4 + 2 * (q & 1), PK + (tt * 2 + c) * 8 + q)
    for tt in range(2):
        for c in range(2):
            for q in range(8):
                r = ACC + (tt * NCT + 2 + c) * 16 + 2 * q
                a(f"v_cvt_pk_bf16_f32 v{PV+(tt*2+c)*8+q}, v{r}, v{r+1}")
    a(f"""s_mov_b32 s30, 0x10000000
          s_mov_b32 s31, 0x10000000
          s_mov_b64 exec, s[30:31]""")
    for tt in range(2):
        for q in range(8):
            a(f"v_mov_b32 v{PV+(tt*2+1)*8+q}, 0x3f803f80")
    a("s_mov_b64 exec, -1\ns_nop 3")
    for st in range(4):
        tt, j = st >> 1, st & 1
        for ka in range(2):
            for vb in range(2):
                d = vr(ACC + (ka * 2 + vb) * 16, 16)
                a(f"v_mfma_f32_32x32x16_bf16 {d}, {vr(PK+(tt*2+ka)*8+4*j,4)}, {vr(PV+(tt*2+vb)*8+4*j,4)}, {d if st else 0}")
    a(f"""v_and_b32 v1, 63, v0
          v_lshlrev_b32 v1, 4, v1
          s_lshl_b32 s30, s16, 14
          v_add_u32 v2, s30, v1
          s_lshl_b32 s30, s16, 12
          v_add_u32 v3, s30, v1
          s_barrier
          s_nop 7""")
    for t in range(16):
        a(f"ds_write_b128 v2, {vr(ACC+4*t,4)} offset:{t*1024}")
    a("s_waitcnt lgkmcnt(0)\ns_barrier")
    for w in range(4):
        for i in range(4):
            a(f"ds_read_b128 {vr(32+16*w+4*i,4)}, v3 offset:{w*16384+i*1024}")
    a(f"""s_and_b32 s30, s16, 1
          s_lshl_b32 s30, s30, 5
          v_and_b32 v1, 31, v0
          v_add_u32 v1, s30, v1
          v_mul_u32_u24 v2, 3277, v1
          v_lshrrev_b32 v2, 16, v2
          v_mul_u32_u24 v3, 20, v2
          v_sub_u32 v3, v1, v3
          v_cmp_eq_u32 s[32:33], 60, v1
          v_bfe_u32 v4, v0, 5, 1
          s_lshr_b32 s30, s16, 1
          s_lshl_b32 s30, s30, 3
          v_add_u32 v4, s30, v4
          v_cndmask_b32 v3, v3, 20, s[32:33]
          v_mul_u32_u24 v3, 80, v3
          s_lshl_b32 s30, s22, 5
          s_mul_i32 s31, s23, 3
          s_add_u32 s30, s30, s31
          s_mul_i32 s30, s30, 1680
          s_add_u32 s30, s30, {WS_KVP}
          v_add_u32 v3, s30, v3
          s_sub_u32 s34, 32, s31
          s_min_u32 s34, s34, 3
          s_mov_b32 s35, {1680-80}
          s_waitcnt lgkmcnt(0)""")
    for w in range(1, 4):
        for r in range(0, 16, 2):
            a(f"v_pk_add_f32 {vr(32+r,2)}, {vr(32+r,2)}, {vr(32+16*w+r,2)}")
    for i in range(4):
        a(f"""v_add_u32 v5, {2*i}, v4
              v_mul_u32_u24 v6, 205, v5
              v_lshrrev_b32 v6, 10, v6
              v_cmp_eq_u32 vcc, v6, v2
              v_cmp_gt_u32 s[36:37], s34, v6
              v_lshl_add_u32 v7, v5, 4, v3
              v_mad_u32_u24 v7, v6, s35, v7
              s_or_b64 vcc, vcc, s[32:33]
              s_and_b64 exec, vcc, s[36:37]
              buffer_store_dwordx4 {vr(32+4*i,4)}, v7, s[12:15], 0 offen
              s_mov_b64 exec, -1""")
    stamp(a, 2)
    stamp_flush(a, 0, 3, 12, "k1c")
    a("k1_exit:\ns_endpgm")
    gemm_loader(a, p, TM, NSL, 3840, 47, OPT["ld_aux1"])

def k3(a):
    TM, NCT, NSL = 128, 2, 4
    a(f"""s_cmp_ge_u32 s2, 160
          s_cbranch_scc1 k3_exit
          s_load_dwordx2 s[60:61], s[0:1], 16
          s_load_dwordx4 s[64:67], s[0:1], 40
          s_load_dwordx2 s[68:69], s[0:1], 64
          v_lshrrev_b32 v1, 6, v0
          s_and_b32 s17, s2, 7
          s_lshr_b32 s18, s2, 3
          v_readfirstlane_b32 s16, v1
          s_lshr_b32 s19, s17, 2
          s_and_b32 s20, s17, 3
          s_and_b32 s22, s18, 3
          s_lshr_b32 s23, s18, 2
          s_lshl_b32 s20, s20, 2
          s_add_u32 s22, s22, s20
          s_mul_i32 s24, s22, {128*1280}
          s_mul_i32 s26, s19, {SEC}
          s_add_u32 s24, s24, s26
          s_add_u32 s24, s24, {WS_OA}
          s_lshl_b32 s25, s23, 8""")
    stamp(a, 0)
    a(f"""s_waitcnt lgkmcnt(0)
          s_cmp_lg_u32 s19, 0
          s_cselect_b32 s60, s64, s60
          s_cselect_b32 s61, s65, s61""")
    srd(a, 4, 68, WS_SIZE + (0x400000 if OPT["stamps"] else 0))
    srd(a, 8, 60, 640*640*2)
    srd(a, 12, 66, 2048*1280*2)
    a(f"""s_cmp_ge_u32 s16, 4
          s_cbranch_scc1 k3_loader
          s_lshr_b32 s40, s16, 1
          s_lshl_b32 s40, s40, 6
          s_and_b32 s41, s16, 1
          s_lshl_b32 s41, s41, 1""")
    gemm_consumer_setup(a, TM, NCT)
    gemm_mainloop(a, "k3T", TM, NCT, NSL, False)
    stamp(a, 1)
    a(f"""v_and_b32 v1, 31, v0
          v_bfe_u32 v2, v0, 5, 1
          s_lshl_b32 s30, s22, 7
          s_add_u32 s30, s30, s40
          v_add_u32 v1, s30, v1
          v_mul_u32_u24 v1, 2560, v1
          v_lshl_add_u32 v1, v2, 4, v1
          s_mul_i32 s30, s19, 1280
          s_add_u32 s30, s30, s25
          s_lshl_b32 s31, s41, 6
          s_add_u32 s30, s30, s31
          v_add_u32 v1, s30, v1
          v_add_u32 v2, {32*2560}, v1""")
    n = 0
    for tt in range(2):
        for c in range(NCT):
            for pr in range(2):
                r = ACC + (tt * NCT + c) * 16 + 8 * pr
                d = 32 + 4 * (n & 7)
                for q in range(4):
                    a(f"v_cvt_pk_bf16_f32 v{d+q}, v{r+2*q}, v{r+2*q+1}")
                a(f"""s_nop 1
                      v_permlane32_swap_b32 v{d}, v{d+2}
                      v_permlane32_swap_b32 v{d+1}, v{d+3}
                      buffer_store_dwordx4 {vr(d,4)}, v{1+tt}, s[12:15], 0 offen offset:{c*64+pr*32}""")
                n += 1
    stamp(a, 2)
    stamp_flush(a, 2, 3, 4, "k3a")
    a("k3_exit:\ns_endpgm")
    gemm_loader(a, "k3", TM, NSL, 1280, 0, OPT["ld_aux3"])

VKM, VKT, VV, VD = 8, 9, 10, 11
QM, QT0, QT1 = 16, 20, 22
KM, KT, VA_, VB_, PA, PB = 24, 28, 32, 36, 40, 44
S0, S1, CR, OR_ = 48, 64, 80, 96
KVR, QB = 112, 124
SLOT = 24576
L_KV = 3 * SLOT + 256
L_FLAG = L_KV + 8 * 3072
K2_LDS = L_FLAG + 64

def k2_dma(a):
    for i in range(3):
        a(f"""s_add_u32 m0, s28, {i*1024}
              s_mov_b64 exec, s[{20+2*i}:{21+2*i}]
              buffer_load_dwordx4 v{VD+i}, s[4:7], s27 offen lds""")
    a(f"""s_mov_b64 exec, -1
          s_add_u32 s27, s27, 10240
          s_add_u32 s28, s28, {SLOT}
          s_cmp_ge_u32 s28, {3*SLOT}
          s_cselect_b32 s30, {3*SLOT}, 0
          s_sub_u32 s28, s28, s30""")

def qk(a_, S, tpar, C):
    return [f"v_mfma_f32_32x32x16_bf16 {vr(S,16)}, {vr(KM,4)}, {vr(QM,4)}, {C}",
            f"v_mfma_f32_32x32x8_bf16 {vr(S,16)}, {vr(KT,2)}, {vr(QT1 if tpar else QT0,2)}, {vr(S,16)}"]

def norm_store(a, O, addr, eps):
    a(f"""v_mov_b32 v2, v{O+8}
          v_mov_b32 v3, v{O+8}
          s_nop 1
          v_permlane32_swap_b32 v2, v3""")
    if eps: a(f"s_nop 0\nv_add_f32 v3, s52, v3")
    a(f"""s_nop 0
          v_rcp_f32 v4, v3
          s_nop 0""")
    for r in range(12):
        a(f"v_mul_f32 v{O+r}, v4, v{O+r}")
    for q in range(6):
        a(f"v_cvt_pk_bf16_f32 v{O+q}, v{O+2*q}, v{O+2*q+1}")
    a(f"""buffer_store_dwordx2 {vr(O,2)}, v{addr}, s[4:7], 0 offen
          buffer_store_dwordx2 {vr(O+2,2)}, v{addr}, s[4:7], 0 offen offset:16
          s_mov_b64 exec, s[34:35]
          buffer_store_dwordx2 {vr(O+4,2)}, v{addr}, s[4:7], 0 offen offset:32
          s_mov_b64 exec, -1""")

def k2(a):
    a(f"""s_cmp_ge_u32 s2, 256
          s_cbranch_scc1 k2_exit
          s_load_dwordx2 s[8:9], s[0:1], 64
          v_lshrrev_b32 v1, 6, v0
          s_and_b32 s17, s2, 7
          s_lshr_b32 s18, s2, 3
          v_readfirstlane_b32 s16, v1
          s_lshl_b32 s17, s17, 2
          s_and_b32 s19, s18, 3
          s_add_u32 s17, s17, s19
          s_lshr_b32 s18, s18, 2
          s_mul_i32 s19, s17, {HS}""")
    stamp(a, 0)
    a(f"""v_and_b32 v1, 63, v0
          v_and_b32 v2, 31, v1
          v_lshrrev_b32 v3, 5, v1
          s_mov_b32 s34, -1
          s_mov_b32 s35, 0
          s_mov_b32 s36, 0
          s_mov_b32 s37, -1
          s_mov_b32 s38, 0x1fffff
          s_mov_b32 s39, 0x1fffff
          s_mov_b32 s40, 0x1fffff
          s_mov_b32 s41, 0
          s_mov_b32 s50, {fbits(LOG2E)}
          s_mov_b32 s51, {fbits(LOG2E)}
          s_mov_b32 s52, {fbits(1e-6)}
          s_mov_b32 s53, 0
          v_mul_u32_u24 v{VKM}, 48, v2
          v_lshl_add_u32 v{VKM}, v3, 4, v{VKM}
          v_mul_u32_u24 v{VKT}, 48, v1
          v_add_u32 v{VKT}, 32, v{VKT}
          v_mul_u32_u24 v{VV}, 384, v3
          v_lshl_add_u32 v{VV}, v2, 4, v{VV}
          v_add_u32 v{VV}, 12288, v{VV}
          s_lshl_b32 s30, s18, 8
          s_lshl_b32 s31, s16, 5
          s_add_u32 s30, s30, s31
          v_add_u32 v4, s30, v2
          v_mul_u32_u24 v14, 1280, v4
          v_lshl_add_u32 v14, v3, 3, v14
          s_mul_i32 s31, s17, 40
          s_add_u32 s31, s31, {WS_OA}
          v_add_u32 v14, s31, v14
          v_mul_u32_u24 v4, 40, v4
          v_add_u32 v4, s19, v4
          v_lshl_add_u32 v5, v3, 4, v4
          v_lshl_add_u32 v6, v3, 3, v4
          v_mul_u32_u24 v7, 80, v2
          v_lshl_add_u32 v7, v3, 4, v7
          s_lshl_b32 s30, s16, 5
          s_add_u32 s30, s30, s17
          s_mul_i32 s30, s30, 1680
          s_add_u32 s43, s30, {WS_KVP}
          s_mov_b32 s44, {12288+320}""")
    for r in range(12): a(f"v_mov_b32 v{KVR+r}, 0")
    a("s_waitcnt lgkmcnt(0)")
    srd(a, 4, 8, WS_SIZE + (0x400000 if OPT["stamps"] else 0))
    a(f"""s_mov_b32 s31, {WS_QB}
          buffer_load_dwordx4 {vr(QM,4)}, v5, s[4:7], 0 offen
          buffer_load_dwordx2 {vr(QT0,2)}, v4, s[4:7], 0 offen offset:32""")
    a(f"""s_cmp_ge_u32 s16, 4
          s_cbranch_scc1 k2_vsetup
          s_mul_i32 s32, s16, {64*40}
          s_add_u32 s27, s19, {WS_KA}
          s_add_u32 s27, s27, s32""")
    for i in range(3):
        a(f"""v_add_u32 v15, {64*i}, v1
              v_mul_u32_u24 v{VD+i}, 21846, v15
              v_lshrrev_b32 v{VD+i}, 16, v{VD+i}
              v_mul_u32_u24 v2, 8, v{VD+i}
              v_lshlrev_b32 v{VD+i}, 4, v15
              v_sub_u32 v{VD+i}, v{VD+i}, v2
              s_mov_b64 s[{20+2*i}:{21+2*i}], -1""")
    a(f"""s_branch k2_dsetup_done
          k2_vsetup:
          s_sub_u32 s32, s16, 4
          s_mul_i32 s32, s32, {8*320}
          s_add_u32 s27, s19, {WS_VA}
          s_add_u32 s27, s27, s32""")
    for i in range(3):
        m = 0
        for l in range(64):
            if (64 * i + l) % 24 < 20: m |= 1 << l
        a(f"""v_add_u32 v15, {64*i}, v1
              v_mul_u32_u24 v{VD+i}, 2731, v15
              v_lshrrev_b32 v{VD+i}, 16, v{VD+i}
              v_lshlrev_b32 v2, 6, v{VD+i}
              v_lshlrev_b32 v{VD+i}, 4, v15
              v_sub_u32 v{VD+i}, v{VD+i}, v2
              s_mov_b32 s{20+2*i}, {m & 0xffffffff}
              s_mov_b32 s{21+2*i}, {m >> 32}""")
    a(f"""k2_dsetup_done:
          s_mov_b32 s26, s27
          s_mul_i32 s29, s16, 3072
          s_mov_b32 s28, s29""")
    k2_dma(a)
    a(f"""s_mov_b64 exec, s[38:39]
          buffer_load_dwordx4 {vr(KVR,4)}, v7, s[4:7], s43 offen
          buffer_load_dwordx4 {vr(KVR+4,4)}, v7, s[4:7], s43 offen offset:32
          s_mov_b64 exec, s[40:41]
          buffer_load_dwordx4 {vr(KVR+8,4)}, v7, s[4:7], s43 offen offset:64
          s_mov_b64 exec, -1
          buffer_load_dwordx2 {vr(QB,2)}, v6, s[4:7], s31 offen
          buffer_load_dwordx2 {vr(QB+2,2)}, v6, s[4:7], s31 offen offset:16
          buffer_load_dwordx2 {vr(QB+4,2)}, v4, s[4:7], s31 offen offset:32""")
    k2_dma(a)
    a(f"""v_lshrrev_b32 v2, 5, v0
          v_mul_u32_u24 v2, {SLOT - 32*384}, v2
          v_mul_u32_u24 v15, 384, v0
          v_add3_u32 v2, v2, v15, s44
          v_mov_b32 v{PA}, 0x3f803f80
          v_mov_b32 v{PA+1}, 0x3f803f80
          v_mov_b32 v{PA+2}, 0x3f803f80
          v_mov_b32 v{PA+3}, 0x3f803f80
          v_cmp_gt_u32 vcc, 96, v0
          s_and_saveexec_b64 s[32:33], vcc
          ds_write_b128 v2, {vr(PA,4)}
          s_mov_b64 exec, -1
          v_mov_b32 v2, {L_FLAG}
          v_mov_b32 v{PB}, 0
          ds_write_b32 v2, v{PB}
          v_and_b32 v2, 63, v0
          v_lshlrev_b32 v15, 4, v2
          v_add_u32 v15, {L_KV}, v15
          v_add_u32 v2, s29, v15
          s_waitcnt vmcnt(3)
          ds_write_b128 v2, {vr(KVR,4)}
          ds_write_b128 v2, {vr(KVR+4,4)} offset:1024
          ds_write_b128 v2, {vr(KVR+8,4)} offset:2048""")
    a(f"""k2_restart:
          s_waitcnt vmcnt(3) lgkmcnt(0)
          s_barrier""")
    stamp(a, 1)
    a(f"""ds_read_b128 {vr(KM,4)}, v{VKM}
          ds_read_b64 {vr(KT,2)}, v{VKT}
          s_cmp_lg_u32 s53, 0
          s_cbranch_scc1 k2_havemax
          v_mov_b32 v{QT1}, v{QT0}
          v_mov_b32 v{QT1+1}, v{QT0+1}
          s_mov_b64 exec, s[36:37]
          v_mov_b32 v{QT0}, 0
          v_mov_b32 v{QT0+1}, 0
          s_mov_b64 exec, s[34:35]
          v_mov_b32 v{QT1}, 0
          v_mov_b32 v{QT1+1}, 0
          s_mov_b64 exec, -1
          s_waitcnt lgkmcnt(0)""")
    for m in qk(a, S0, 0, "0"): a(m)
    a("s_nop 7\ns_nop 3")
    a(f"v_max3_f32 v2, v{S0}, v{S0+1}, v{S0+2}")
    for r in range(3, 15, 2):
        a(f"v_max3_f32 v2, v2, v{S0+r}, v{S0+r+1}")
    a(f"""v_max_f32 v2, v2, v{S0+15}
          k2_setmax:
          v_mov_b32 v3, v2
          s_nop 1
          v_permlane32_swap_b32 v2, v3
          s_nop 1
          v_max_f32 v2, v2, v3
          v_sub_f32 v2, 0, v2""")
    for r in range(16): a(f"v_mov_b32 v{CR+r}, v2")
    a(f"""s_cmp_lg_u32 s53, 0
          s_cbranch_scc1 k2_restart
          k2_havemax:
          s_waitcnt lgkmcnt(0)""")
    if OPT['k2_zero']:
        for r in range(QM, QM + 8): a(f"v_mov_b32 v{r}, 0")
        for r in range(CR, CR + 16): a(f"v_mov_b32 v{r}, 0")
        a("s_nop 1")
    for m in qk(a, S0, 0, vr(CR, 16)): a(m)
    a(f"ds_read_b128 {vr(KM,4)}, v{VKM} offset:1536")
    for r in range(16): a(f"v_mov_b32 v{OR_+r}, 0")
    for r in range(4): a(f"v_mov_b32 v{PB+r}, 0\nv_mov_b32 v{VB_+r}, 0")
    a(f"""ds_read_b32 v2, v{VKM}
          s_mov_b32 s45, 0
          s_mov_b32 s46, 0
          s_mov_b32 s48, {SLOT}""")
    stamp(a, 4)
    a(f"""s_waitcnt lgkmcnt(0)
          k2_loop:
          s_add_u32 s46, s46, 1
          s_cmp_eq_u32 s46, 3
          s_cselect_b32 s47, {(-2*SLOT) & 0xffffffff}, s48
          s_cselect_b32 s46, 0, s46""")
    for t in range(8):
        cur, nxt = (S0, S1) if t % 2 == 0 else (S1, S0)
        m = qk(a, nxt, (t + 1) & 1, vr(CR, 16))
        e = lambda i: f"v_exp_f32 v{cur+i}, v{cur+i}"
        c = lambda i: f"v_cvt_pk_bf16_f32 v{(PA if i < 4 else PB - 4) + i}, v{cur+2*i}, v{cur+2*i+1}"
        a("s_waitcnt lgkmcnt(1)")
        a(m[0])
        if t == 6:
            a(f"""s_waitcnt vmcnt(0)
                  {'s_nop 0' if OPT['k2_nobar'] else 's_barrier'}
                  v_add_u32 v{VKM}, s47, v{VKM}
                  v_add_u32 v{VKT}, s47, v{VKT}""")
        a(f"ds_read_b128 {vr(KM,4)}, v{VKM} offset:{((t+2)&7)*1536}")
        a(f"ds_read_b128 {vr(VA_,4)}, v{VV} offset:{t*1536}")
        if t == 6:
            a(f"s_cmp_ge_u32 s45, {0 if OPT['k2_nodma'] else 6}\ns_cbranch_scc1 k2_nodma")
            k2_dma(a)
            a("k2_nodma:")
        for x in (e(0), e(1), e(2), e(3), c(0), c(1)): a(x)
        a(m[1])
        kt = (t + 1) & 1
        if kt: a(f"ds_read_b64 {vr(KT,2)}, v{VKT} offset:{(((t+2)//2)&3)*3072}")
        for x in (e(4), e(5), e(6), e(7), c(2), c(3)): a(x)
        a(f"s_waitcnt lgkmcnt({2+kt})")
        a(f"v_mfma_f32_32x32x16_bf16 {vr(OR_,16)}, {vr(VB_,4)}, {vr(PB,4)}, {vr(OR_,16)}")
        a(f"ds_read_b128 {vr(VB_,4)}, v{VV} offset:{t*1536+768}")
        for x in (e(8), e(9), e(10), e(11), c(4), c(5)): a(x)
        a(f"s_waitcnt lgkmcnt({1+kt})")
        a(f"v_mfma_f32_32x32x16_bf16 {vr(OR_,16)}, {vr(VA_,4)}, {vr(PA,4)}, {vr(OR_,16)}")
        for x in (e(12), e(13), e(14), e(15), c(6), c(7)): a(x)
    a(f"""v_add_u32 v{VV}, s47, v{VV}
          s_add_u32 s45, s45, 1""")
    if OPT["stamps"]:
        a("s_cmp_lg_u32 s45, 1\ns_cbranch_scc1 k2_nost")
        stamp(a, 5)
        a("s_waitcnt lgkmcnt(0)\nk2_nost:")
    a(f"""s_cmp_lt_u32 s45, 8
          s_cbranch_scc1 k2_loop
          s_waitcnt lgkmcnt(0)
          v_mfma_f32_32x32x16_bf16 {vr(OR_,16)}, {vr(VB_,4)}, {vr(PB,4)}, {vr(OR_,16)}""")
    stamp(a, 2)
    a(f"""v_subrev_u32 v{VKM}, {2*SLOT}, v{VKM}
          v_subrev_u32 v{VKT}, {2*SLOT}, v{VKT}
          v_subrev_u32 v{VV}, {2*SLOT}, v{VV}
          s_cmp_lg_u32 s53, 0
          s_cbranch_scc1 k2_final""")
    T = 132
    for w in range(4):
        for i in range(3):
            a(f"ds_read_b128 {vr((KVR if w == 0 else T+12*(w-1))+4*i,4)}, v15 offset:{w*3072+i*1024}")
    for q in range(6):
        a(f"v_lshlrev_b32 v{S1+2*q}, 16, v{QB+q}\nv_and_b32 v{S1+2*q+1}, 0xffff0000, v{QB+q}")
    for q in range(6):
        phi_pair(a, S1 + 2 * q, 4 + 2 * (q & 1), QB + q)
    a(f"""s_mov_b64 exec, s[36:37]
          v_mov_b32 v{QB+4}, 0
          v_mov_b32 v{QB+5}, 0
          s_mov_b64 exec, -1""")
    for w in range(4, 8):
        for i in range(3):
            a(f"ds_read_b128 {vr(T+12*(w-1)+4*i,4)}, v15 offset:{w*3072+i*1024}")
    for w in range(1, 8):
        a(f"s_waitcnt lgkmcnt({min(15, 3*(7-w))})")
        for r in range(0, 12, 2):
            a(f"v_pk_add_f32 {vr(KVR+r,2)}, {vr(KVR+r,2)}, {vr(T+12*(w-1)+r,2)}")
    for q in range(6):
        a(f"v_cvt_pk_bf16_f32 v{KVR+q}, v{KVR+2*q}, v{KVR+2*q+1}")
    a(f"""s_nop 1
          v_mfma_f32_32x32x16_bf16 {vr(S0,16)}, {vr(KVR,4)}, {vr(QB,4)}, 0
          v_mfma_f32_32x32x8_bf16 {vr(S0,16)}, {vr(KVR+4,2)}, {vr(QB+4,2)}, {vr(S0,16)}""")
    norm_store(a, OR_, 14, False)
    a(f"""s_mov_b32 s30, {fbits(2.0**40)}
          v_cmp_nle_f32 vcc, v3, s30
          v_add_u32 v5, {WS_OB-WS_OA}, v14
          s_cmp_eq_u64 vcc, 0
          s_cbranch_scc1 k2_ok
          v_mov_b32 v6, {L_FLAG}
          v_mov_b32 v7, 1
          ds_write_b32 v6, v7
          k2_ok:""")
    norm_store(a, S0, 5, True)
    stamp(a, 3)
    stamp_flush(a, 1, 6, 4, "k2a")
    a(f"""v_mov_b32 v6, {L_FLAG}
          s_waitcnt lgkmcnt(0)
          s_barrier
          ds_read_b32 v7, v6
          s_waitcnt lgkmcnt(0)
          v_readfirstlane_b32 s30, v7
          s_nop 3
          s_cmp_eq_u32 s30, 0
          s_cbranch_scc1 k2_exit""")
    a(f"""s_mov_b32 s53, 1
          s_mov_b32 s27, s26
          s_mov_b32 s45, 0
          v_mov_b32 v2, 0xff800000
          k2_mx_loop:
          s_mov_b32 s28, s29""")
    k2_dma(a)
    a(f"""s_waitcnt vmcnt(0)
          s_barrier
          s_mov_b32 s46, 0
          v_mov_b32 v5, v{VKM}
          v_mov_b32 v6, v{VKT}
          k2_mx_pair:
          ds_read_b128 {vr(KM,4)}, v5
          ds_read_b128 {vr(VA_,4)}, v5 offset:1536
          ds_read_b64 {vr(KT,2)}, v6
          s_waitcnt lgkmcnt(0)""")
    for m in qk(a, S0, 0, "0"): a(m)
    for m in qk(a, S1, 1, "0"): a(m.replace(vr(KM,4), vr(VA_,4)))
    a(f"""v_add_u32 v5, 3072, v5
          v_add_u32 v6, 3072, v6
          s_nop 7
          s_nop 3""")
    for r in range(0, 32, 2):
        a(f"v_max3_f32 v2, v2, v{S0+r}, v{S0+r+1}")
    a(f"""s_add_u32 s46, s46, 1
          s_cmp_lt_u32 s46, 4
          s_cbranch_scc1 k2_mx_pair
          s_barrier
          s_add_u32 s45, s45, 1
          s_cmp_lt_u32 s45, 8
          s_cbranch_scc1 k2_mx_loop
          s_mov_b32 s27, s26
          s_mov_b32 s28, s29""")
    k2_dma(a)
    k2_dma(a)
    a(f"""s_branch k2_setmax
          k2_final:
          s_nop 7""")
    norm_store(a, OR_, 14, False)
    a("k2_exit:\ns_endpgm")

HEADER = open("cdna_kernels/" + NAME + ".s.ref").read().split("; Override launch")[0]

def build():
    kernels = [("k1_qkv_kernel", k1, 256, 512, 3 * (256 * 128 + 16384), 256),
               ("k2_attn_kernel", k2, 256, 512, K2_LDS, 216),
               ("k3_proj_kernel", k3, 160, 512, 4 * (128 * 128 + 16384), 192)]
    for i in range(int(OPT['empties'])):
        kernels.append((f"e{i}_kernel", lambda a: a("s_endpgm"), 1, 64, 0, 8))
    out = HEADER
    for n, f, g, b, lds, nv in kernels:
        out += f"; @launch kernel={n} grid=({g},1,1) block=({b},1,1) lds={lds}\n"
    out += '.amdgcn_target "amdgcn-amd-amdhsa--gfx950"\n.text\n'
    for n, f, g, b, lds, nv in kernels:
        a = Asm(); f(a)
        body = a.text()
        for h in check_hazards(body): print(n, h, file=sys.stderr)
        out += f".globl {n}\n.p2align 8\n.type {n},@function\n{n}:\n" + body
    out += '.section .rodata,"a"\n'
    for n, f, g, b, lds, nv in kernels:
        out += f""".p2align 6
.amdhsa_kernel {n}
  .amdhsa_next_free_vgpr {nv}
  .amdhsa_next_free_sgpr 102
  .amdhsa_accum_offset {(nv+3)//4*4}
  .amdhsa_group_segment_fixed_size 0
  .amdhsa_kernarg_size 72
  .amdhsa_user_sgpr_count 2
  .amdhsa_user_sgpr_kernarg_segment_ptr 1
  .amdhsa_system_sgpr_workgroup_id_x 1
.end_amdhsa_kernel
"""
    return out

if __name__ == "__main__":
    outp = "cdna_kernels/" + NAME + ".s"
    for arg in sys.argv[1:]:
        if "=" in arg:
            k, v = arg.split("=", 1)
            if k == "out": outp = v
            else: OPT[k] = (v == "1") if isinstance(OPT.get(k), bool) else v
    open(outp, "w").write(build())
```

```python
import struct, sys, math
from asmlib import Asm, vr, sr, check_hazards

NAME = "concat_heads__mha_block__linear_attn_block__prompt"
def fbits(x): return struct.unpack("<I", struct.pack("<f", x))[0]
LOG2E = math.log2(math.e)
QSCALE = LOG2E / math.sqrt(20.0)

SEC = 0x280000
WS_QA, WS_KA, WS_VA, WS_QB, WS_KVP, WS_OA, WS_OB = 0, SEC, 2*SEC, 3*SEC, 4*SEC, 6*SEC, 7*SEC
WS_SIZE = 8 * SEC
OSTR = 32768
HS = 81920

OPT = dict(ld_aux1="", ld_aux3="", st1="", st2="", st3="", stamps=False, clk=False, empties='0', diag='',
           g_noread=False, g_nomfma=False, nopf=False, k3_xrow=False, k3_wlin=False, hprio='1', aprio='0')

def srd(a, d, lo, size):
    a(f"""s_mov_b32 s{d}, s{lo}
          s_and_b32 s{d+1}, s{lo+1}, 0xffff
          s_mov_b32 s{d+2}, {size}
          s_mov_b32 s{d+3}, 0x20000""")
def ws_size(): return WS_SIZE + (0x400000 if OPT["stamps"] else 0)

def stamp(a, idx):
    if not OPT["stamps"]: return
    a(f"{'s_memtime' if OPT['clk'] else 's_memrealtime'} s[{74+2*idx}:{75+2*idx}]")

def stamp_flush(a, kidx, n, wsreg):
    if not OPT["stamps"]: return
    a(f"""s_waitcnt lgkmcnt(0)
          s_lshl_b32 s88, s2, 4
          s_add_u32 s88, s88, s16
          s_lshl_b32 s88, s88, 5
          s_add_u32 s88, s88, {WS_SIZE + kidx*0x40000}
          s_mov_b64 exec, 1
          v_mov_b32 v1, s88""")
    for i in range(n):
        a(f"v_mov_b32 v2, s{74+2*i}\nbuffer_store_dword v2, v1, s[{wsreg}:{wsreg+3}], 0 offen offset:{4*i}")
    a("s_mov_b64 exec, -1")

XA, WA = 16, 20
FR = 32
ACC = 128

def loader_lane_setup(a, pitch, planes):
    a(f"""v_and_b32 v1, 63, v0
          v_lshrrev_b32 v3, 4, v1""")
    if planes:
        a("v_lshlrev_b32 v8, 4, v1\nv_add_u32 v9, 1024, v8")
    else:
        a(f"""v_lshrrev_b32 v2, 3, v1
              v_mul_u32_u24 v2, 1280, v2
              v_and_b32 v4, 7, v1
              v_xor_b32 v4, v4, v3
              v_lshl_add_u32 v8, v4, 4, v2
              v_xor_b32 v9, 64, v8""")
    a(f"""v_and_b32 v4, 15, v1
          v_lshlrev_b32 v5, 2, v3
          v_xor_b32 v4, v4, v5
          v_mul_u32_u24 v2, {pitch}, v3
          v_lshl_add_u32 v10, v4, 4, v2""")

def gemm_loader(a, p, TM, nslots, pitch, planes, aux, kidx, wsreg):
    NX = TM // 32
    SB = TM * 128 + 16384
    per = NX + 4
    if planes:
        assert TM == 128
        xw, xi, xstage = 2 * OSTR, [(i >> 1) * OSTR for i in range(NX)], 8 * OSTR
    else:
        xw, xi, xstage = NX * 8 * 1280, [i * 8 * 1280 for i in range(NX)], 128
    a(f"""s_sub_u32 s30, s16, 4
          s_mul_i32 s31, s30, {xw}
          s_add_u32 s24, s24, s31
          s_mul_i32 s32, s30, {NX*1024}
          s_lshl_b32 s33, s30, 12
          s_add_u32 s33, s33, {TM*128}
          s_mov_b32 s34, 0
          s_mov_b32 s35, 0
          s_mul_i32 s31, s30, {16*pitch}
          s_add_u32 s25, s25, s31""")
    stamp(a, 1)
    a(f"""{p}_ld_loop:
          s_cmp_lt_u32 s34, {nslots}
          s_cbranch_scc1 {p}_ld_issue
          s_waitcnt vmcnt({per*(nslots-2)})
          s_barrier
          {p}_ld_issue:
          s_add_u32 s36, s35, s32
          s_add_u32 s37, s35, s33""")
    for i in range(NX):
        a(f"""s_add_u32 m0, s36, {i*1024}
              s_add_u32 s38, s24, {xi[i]}
              buffer_load_dwordx4 v{8+(i&1)}, s[4:7], s38 offen {aux} lds""")
    a(f"""s_cmp_lg_u32 s34, 1
          s_cbranch_scc1 {p}_ld_w
          s_waitcnt vmcnt({NX})""")
    stamp(a, 3)
    a(f"""s_barrier
          {p}_ld_w:""")
    for i in range(4):
        a(f"""s_add_u32 m0, s37, {i*1024}
              s_add_u32 s38, s25, {i*4*pitch}
              buffer_load_dwordx4 v10, s[8:11], s38 offen {aux} lds""")
    a(f"""s_add_u32 s24, s24, {xstage}
          s_add_u32 s25, s25, {64*pitch}
          s_add_u32 s35, s35, {SB}
          s_cmp_eq_u32 s35, {SB*nslots}
          s_cselect_b32 s35, 0, s35
          s_add_u32 s34, s34, 1
          s_cmp_lt_u32 s34, 10
          s_cbranch_scc1 {p}_ld_loop""")
    for r in range(nslots - 2, -1, -1):
        a(f"s_waitcnt vmcnt({per*r})\ns_barrier")
    stamp(a, 2); stamp(a, 4)
    stamp_flush(a, kidx, 5, wsreg)
    a("s_endpgm")

def gemm_consumer_setup(a, TM, NCT, planes=False):
    a(f"""v_and_b32 v1, 63, v0
          v_and_b32 v2, 31, v1
          v_lshrrev_b32 v3, 5, v1
          v_add_u32 v4, s40, v2""")
    if planes:
        a(f"""v_lshlrev_b32 v4, 4, v4
              v_lshl_add_u32 v{XA}, v3, 11, v4""")
    else:
        a(f"""v_lshrrev_b32 v5, 1, v4
              v_and_b32 v5, 7, v5
              v_xor_b32 v5, v5, v3
              v_lshlrev_b32 v4, 7, v4
              v_lshl_add_u32 v{XA}, v5, 4, v4
              v_xor_b32 v{XA+1}, 32, v{XA}
              v_xor_b32 v{XA+2}, 64, v{XA}
              v_xor_b32 v{XA+3}, 0x60, v{XA}""")
    a(f"""v_and_b32 v4, 15, v1
          v_lshrrev_b32 v5, 2, v4
          v_lshl_add_u32 v6, v3, 3, v5
          v_lshlrev_b32 v6, 8, v6
          v_bfe_u32 v7, v1, 4, 1
          v_lshlrev_b32 v7, 1, v7
          v_bfe_u32 v8, v1, 1, 1
          v_add_u32 v7, v7, v8
          v_lshlrev_b32 v5, 2, v5
          v_xor_b32 v7, v7, v5
          v_lshl_add_u32 v6, v7, 4, v6
          v_and_b32 v7, 1, v1
          v_lshl_add_u32 v6, v7, 3, v6
          v_add_u32 v6, {TM*128}, v6
          s_lshl_b32 s42, s41, 6
          v_xor_b32 v{WA}, s42, v6""")
    for c in range(1, NCT):
        a(f"v_xor_b32 v{WA+c}, {c*64}, v{WA}")
    for r in range(0, 2 * NCT * 16, 2):
        a(f"v_pk_mov_b32 {vr(ACC+r,2)}, 0, 0")

def gemm_reads(NCT, buf, ks, planes=False):
    b = FR + 24 * buf
    if planes: o = [f"ds_read_b128 {vr(b+4*tt,4)}, v{XA} offset:{ks*4096+tt*512}" for tt in range(2)]
    else: o = [f"ds_read_b128 {vr(b+4*tt,4)}, v{XA+ks} offset:{tt*4096}" for tt in range(2)]
    for c in range(NCT):
        for u in range(2):
            o.append(f"ds_read_b64_tr_b16 {vr(b+8+4*c+2*u,2)}, v{WA+c} offset:{ks*4096+u*1024}")
    return o

def gemm_mainloop(a, p, TM, NCT, nslots, orientF, planes=False):
    SB = TM * 128 + 16384
    a(f"s_mov_b32 s43, 0\ns_mov_b32 s44, 0\ns_mov_b32 s48, {SB}\ns_barrier")
    stamp(a, 3)
    if OPT["stamps"]: a("s_waitcnt lgkmcnt(0)")
    for r in gemm_reads(NCT, 0, 0, planes): a(r)
    a(f"{p}_loop:")
    if OPT["stamps"]:
        a(f"s_cmp_lg_u32 s43, 5\ns_cbranch_scc1 {p}_nost")
        stamp(a, 4)
        a(f"{p}_nost:")
    nm = 2 * NCT
    for ks in range(4):
        b = FR + 24 * (ks & 1)
        mf = []
        for c in range(NCT):
            for tt in range(2):
                d = vr(ACC + (tt * NCT + c) * 16, 16)
                xf, wf = vr(b + 4 * tt, 4), vr(b + 8 + 4 * c, 4)
                A, B = (xf, wf) if orientF else (wf, xf)
                mf.append(f"v_mfma_f32_32x32x16_bf16 {d}, {A}, {B}, {d}")
        rd = gemm_reads(NCT, (ks + 1) & 1, (ks + 1) & 3, planes)
        if OPT['g_noread']: rd = []
        if OPT['g_nomfma']: mf = ["s_nop 0"] * len(mf)
        gaps = [[] for _ in range(nm)]
        upd = lambda r: f"v_add_u32 v{r}, s45, v{r}"
        if ks == 2:
            gaps[nm - 1] += ["s_add_u32 s44, s44, 1", f"s_cmp_eq_u32 s44, {nslots}",
                             f"s_cselect_b32 s45, {(-(nslots-1)*SB) & 0xffffffff}, s48", "s_cselect_b32 s44, 0, s44",
                             "s_add_u32 s43, s43, 1"]
        if ks == 3:
            gaps[0] += ["s_cmp_eq_u32 s43, 10", f"s_cbranch_scc1 {p}_nobar", "s_barrier", f"{p}_nobar:"]
            if NCT == 4:
                gaps[1] += [upd(XA)] + [upd(WA + c) for c in range(4)]
                for i in range(3): gaps[2 + i] += rd[3 * i:3 * i + 3]
                gaps[5] += rd[9:] + [upd(XA + 1), upd(XA + 2), upd(XA + 3)]
            else:
                gaps[0] += [upd(XA), upd(WA), upd(WA + 1)] + rd[0:2]
                gaps[1] += rd[2:6]
                if not planes: gaps[2] += [upd(XA + 1), upd(XA + 2), upd(XA + 3)]
            gaps[nm - 2] += ["s_cmp_lt_u32 s43, 10"]
        else:
            per = 2 if NCT == 4 else 3
            for i in range(nm): gaps[i] = rd[i * per:(i + 1) * per] + gaps[i]
        a("s_waitcnt lgkmcnt(0)")
        for i, m in enumerate(mf):
            a(m)
            for x in gaps[i]: a(x)
    a(f"""s_cbranch_scc1 {p}_loop
          s_waitcnt lgkmcnt(0)
          s_nop 7
          s_nop 3""")

def phi_pair(a, r, t, dst):
    a(f"""v_pk_mul_f32 {vr(t,2)}, {vr(r,2)}, s[50:51]
          v_max_f32 v{r}, s52, v{r}
          v_exp_f32_e64 v{t}, v{t} clamp
          v_exp_f32_e64 v{t+1}, v{t+1} clamp
          v_max_f32 v{r+1}, s52, v{r+1}
          v_pk_add_f32 {vr(r,2)}, {vr(r,2)}, {vr(t,2)}
          v_cvt_pk_bf16_f32 v{dst}, v{r}, v{r+1}""")

def k1(a):
    TM, NCT, NSL = 256, 4, 3
    st = OPT["st1"]
    a(f"""s_load_dwordx4 s[60:63], s[0:1], 0
          s_load_dwordx4 s[64:67], s[0:1], 24
          s_load_dwordx2 s[68:69], s[0:1], 64""")
    stamp(a, 0)
    a(f"""s_cmp_ge_u32 s2, 256
          s_cbranch_scc1 k1_exit
          v_lshrrev_b32 v1, 6, v0
          s_and_b32 s17, s2, 7
          s_lshr_b32 s18, s2, 3
          v_readfirstlane_b32 s16, v1
          s_lshr_b32 s19, s17, 2
          s_and_b32 s20, s17, 1
          s_bfe_u32 s21, s17, 0x10001
          s_and_b32 s22, s18, 3
          s_lshr_b32 s23, s18, 2
          s_lshl_b32 s26, s21, 3
          s_add_u32 s23, s23, s26""")
    a(f"""s_cmp_lg_u32 s19, 0
          s_cbranch_scc1 k1_dec
          s_cmp_lt_u32 s18, 28
          s_cbranch_scc1 k1_dec
          s_cmp_ge_u32 s18, 30
          s_cbranch_scc1 k1_exit
          s_sub_u32 s22, s18, 28
          s_lshl_b32 s26, s21, 1
          s_add_u32 s22, s22, s26
          s_mov_b32 s23, 7
          k1_dec:
          s_lshl_b32 s20, s20, 2
          s_add_u32 s22, s22, s20
          s_mul_i32 s24, s22, {256*1280}
          s_lshl_b32 s25, s23, 8
          s_mul_i32 s26, s23, 52
          s_lshr_b32 s26, s26, 8
          s_mul_i32 s27, s26, 5
          s_sub_u32 s27, s23, s27
          s_lshl_b32 s27, s27, 7
          s_mov_b32 s47, 0
          s_cmp_eq_u32 s26, 2
          s_cselect_b32 s46, 1, 0
          s_mul_i32 s28, s26, {SEC}
          s_cmp_lg_u32 s19, 0
          s_cbranch_scc0 k1_dec2
          s_mov_b32 s28, {WS_QB}
          s_mov_b32 s46, 0
          s_cmp_lt_u32 s23, 5
          s_cbranch_scc1 k1_dec2
          s_mov_b32 s46, 2
          s_mov_b32 s47, 1152
          s_sub_u32 s23, s23, 5
          s_mul_i32 s25, s23, 120
          s_add_u32 s25, s25, 1280
          s_and_b32 s25, s25, 0xfffffff0
          k1_dec2:""")
    loader_lane_setup(a, 3840, False)
    a(f"""v_lshrrev_b32 v4, 3, v4
          v_mul_u32_u24 v4, s47, v4
          v_add_u32 v10, v10, v4
          s_waitcnt lgkmcnt(0)
          s_cmp_lg_u32 s19, 0
          s_cselect_b32 s60, s64, s60
          s_cselect_b32 s61, s65, s61
          s_cselect_b32 s62, s66, s62
          s_cselect_b32 s63, s67, s63""")
    srd(a, 4, 60, 2048*640*2)
    srd(a, 8, 62, 640*1920*2)
    srd(a, 12, 68, ws_size())
    a(f"""s_cmp_lt_u32 s16, 4
          s_cbranch_scc1 k1_cons""")
    gemm_loader(a, "k1", TM, NSL, 3840, False, OPT["ld_aux1"], 0, 12)
    a(f"""k1_cons:
          s_lshl_b32 s40, s16, 6
          s_mov_b32 s41, 0""")
    gemm_consumer_setup(a, TM, NCT)
    a(f"""s_mov_b32 s50, {fbits(LOG2E)}
          s_mov_b32 s51, {fbits(LOG2E)}
          s_mov_b32 s52, {fbits(1e-6)}
          s_cmp_lg_u32 s46, 0
          s_cbranch_scc1 k1_F""")
    gemm_mainloop(a, "k1T", TM, NCT, NSL, False)
    stamp(a, 1)
    a(f"""s_cmp_eq_u32 s26, 0
          s_cselect_b32 s54, {fbits(QSCALE)}, 1.0
          s_mov_b32 s55, s54
          v_and_b32 v1, 31, v0
          v_bfe_u32 v2, v0, 5, 1
          v_add_u32 v1, s40, v1
          v_lshlrev_b32 v1, 4, v1
          v_mul_u32_u24 v2, {OSTR}, v2
          v_add_u32 v1, v1, v2
          s_lshl_b32 s30, s22, 12
          s_mul_i32 s31, s27, {OSTR//8}
          s_add_u32 s30, s30, s31
          s_add_u32 s30, s30, s28
          s_cmp_lg_u32 s19, 0
          s_cbranch_scc1 k1_Tphi""")
    for variant in ("scale", "phi"):
        if variant == "phi": a("k1_Tphi:")
        n = 0
        for c in range(NCT):
            for pr in range(2):
                for tt in range(2):
                    r = ACC + (tt * NCT + c) * 16 + 8 * pr
                    d = 32 + 4 * (n & 7)
                    for q in range(4):
                        if variant == "scale":
                            a(f"v_pk_mul_f32 {vr(r+2*q,2)}, {vr(r+2*q,2)}, s[54:55]")
                        else:
                            phi_pair(a, r + 2 * q, 6 + 2 * (q & 1), d + q)
                    if variant == "scale":
                        for q in range(4): a(f"v_cvt_pk_bf16_f32 v{d+q}, v{r+2*q}, v{r+2*q+1}")
                    a(f"""s_add_u32 s31, s30, {(4*c+2*pr)*OSTR}
                          s_nop 0
                          v_permlane32_swap_b32 v{d}, v{d+2}
                          v_permlane32_swap_b32 v{d+1}, v{d+3}
                          buffer_store_dwordx4 {vr(d,4)}, v1, s[12:15], s31 offen offset:{tt*512} {st}""")
                    n += 1
        stamp(a, 2)
        stamp_flush(a, 0, 5, 12)
        a("s_endpgm")
    a("k1_F:")
    gemm_mainloop(a, "k1F", TM, NCT, NSL, True)
    stamp(a, 1)
    a(f"""s_cmp_eq_u32 s46, 2
          s_cbranch_scc1 k1_KV
          s_mov_b32 s56, {HS}
          v_and_b32 v1, 31, v0
          v_bfe_u32 v2, v0, 5, 1
          v_add_u32 v1, s27, v1
          v_mul_u32_u24 v2, 320, v2
          s_lshl_b32 s30, s22, 4
          s_lshl_b32 s31, s16, 2
          s_add_u32 s30, s30, s31
          s_mul_i32 s30, s30, 640
          s_add_u32 s30, s30, s28
          v_add_u32 v2, s30, v2""")
    n = 0
    for c in range(NCT):
        a(f"""v_add_u32 v3, {32*c}, v1
              v_mul_u32_u24 v4, 3277, v3
              v_lshrrev_b32 v4, 16, v4
              v_mul_u32_u24 v7, 20, v4
              v_sub_u32 v3, v3, v7
              v_and_b32 v7, 1, v4
              v_lshlrev_b32 v7, 2, v7
              v_sub_u32 v3, v3, v7
              v_add_u32 v7, 20, v3
              v_min_u32 v3, v3, v7
              v_lshl_add_u32 v3, v3, 4, v2
              v_mad_u32_u24 v{5+(c&1)}, v4, s56, v3""")
        for tt in range(2):
            for j in range(2):
                r = ACC + (tt * NCT + c) * 16 + 8 * j
                d = 32 + 4 * (n & 7)
                for q in range(4):
                    a(f"v_cvt_pk_bf16_f32 v{d+q}, v{r+2*q}, v{r+2*q+1}")
                a(f"buffer_store_dwordx4 {vr(d,4)}, v{5+(c&1)}, s[12:15], 0 offen offset:{(2*tt+j)*640} {st}")
                n += 1
    stamp(a, 2)
    stamp_flush(a, 0, 5, 12)
    a("s_endpgm")
    a("k1_KV:")
    PK, PV = 32, 64
    for tt in range(2):
        for c in range(2):
            for q in range(8):
                r = ACC + (tt * NCT + 2 + c) * 16 + 2 * q
                a(f"v_cvt_pk_bf16_f32 v{PV+(tt*2+c)*8+q}, v{r}, v{r+1}")
    a(f"""s_and_b32 s29, s23, 1
          s_cselect_b32 s30, 0, 0x10000000
          s_mov_b32 s31, s30
          s_mov_b64 exec, s[30:31]""")
    for tt in range(2):
        for q in range(8):
            a(f"v_mov_b32 v{PV+(tt*2+1)*8+q}, 0x3f803f80")
    a(f"""s_mov_b32 s30, s29
          s_mov_b32 s31, s29
          s_mov_b64 exec, s[30:31]""")
    for tt in range(2):
        for q in range(8):
            a(f"v_mov_b32 v{PV+(tt*2)*8+q}, 0x3f803f80")
    a("s_mov_b64 exec, -1")
    DK = ACC + 32
    dreg = lambda ka, vb: ACC + (ka * NCT + 2 + vb) * 16
    for tt in range(2):
        for j in range(2):
            for ka in range(2):
                for q in range(4):
                    r = ACC + (tt * NCT + ka) * 16 + 8 * j + 2 * q
                    phi_pair(a, r, 4 + 2 * (q & 1), PK + (tt * 2 + ka) * 8 + 4 * j + q)
                a("s_nop 1")
                for vb in range(2):
                    d = vr(dreg(ka, vb), 16)
                    a(f"v_mfma_f32_32x32x16_bf16 {d}, {vr(PK+(tt*2+ka)*8+4*j,4)}, {vr(PV+(tt*2+vb)*8+4*j,4)}, {d if (tt or j) else 0}")
    a(f"""v_and_b32 v1, 63, v0
          v_lshlrev_b32 v1, 4, v1
          s_lshl_b32 s30, s16, 14
          v_add_u32 v2, s30, v1
          s_lshl_b32 s30, s16, 12
          v_add_u32 v3, s30, v1
          s_barrier
          s_nop 7""")
    for t in range(4):
        for i in range(4):
            a(f"ds_write_b128 v2, {vr(dreg(t>>1, t&1)+4*i,4)} offset:{(4*t+i)*1024}")
    a("s_waitcnt lgkmcnt(0)\ns_barrier")
    for w in range(4):
        for i in range(4):
            a(f"ds_read_b128 {vr(32+16*w+4*i,4)}, v3 offset:{w*16384+i*1024}")
    a(f"""s_and_b32 s30, s16, 1
          s_lshl_b32 s30, s30, 5
          s_lshl_b32 s38, s29, 2
          s_sub_u32 s30, s30, s38
          s_mul_i32 s31, s23, 3
          s_cmp_lg_u32 s29, 0
          s_cselect_b32 s39, -4, 60
          v_and_b32 v1, 31, v0
          v_add_u32 v1, s30, v1
          v_cmp_eq_u32 s[32:33], s39, v1
          v_and_b32 v1, 0xff, v1
          v_mul_u32_u24 v2, 3277, v1
          v_lshrrev_b32 v2, 16, v2
          v_mul_u32_u24 v3, 20, v2
          v_sub_u32 v3, v1, v3
          v_add_u32 v5, s31, v2
          v_and_b32 v5, 1, v5
          v_lshlrev_b32 v5, 2, v5
          v_sub_u32 v3, v3, v5
          v_add_u32 v5, 20, v3
          v_min_u32 v3, v3, v5
          v_cndmask_b32 v3, v3, 20, s[32:33]
          v_mul_u32_u24 v3, 80, v3
          v_bfe_u32 v4, v0, 5, 1
          s_lshr_b32 s30, s16, 1
          s_lshl_b32 s30, s30, 3
          s_sub_u32 s30, s30, s29
          v_add_u32 v4, s30, v4
          s_lshl_b32 s30, s22, 5
          s_add_u32 s30, s30, s31
          s_mul_i32 s30, s30, 1680
          s_add_u32 s30, s30, {WS_KVP}
          v_add_u32 v3, s30, v3
          s_sub_u32 s34, 32, s31
          s_min_u32 s34, s34, 3
          s_mov_b32 s35, 1680
          s_waitcnt lgkmcnt(0)""")
    for w in range(1, 4):
        for r in range(0, 16, 2):
            a(f"v_pk_add_f32 {vr(32+r,2)}, {vr(32+r,2)}, {vr(32+16*w+r,2)}")
    for i in range(4):
        a(f"""v_add_u32 v5, {2*i}, v4
              v_and_b32 v5, 0xff, v5
              v_mul_u32_u24 v6, 205, v5
              v_lshrrev_b32 v6, 10, v6
              v_cmp_eq_u32 vcc, v6, v2
              v_cmp_gt_u32 s[36:37], s34, v6
              v_mul_u32_u24 v7, 5, v6
              v_sub_u32 v5, v5, v7
              v_add_u32 v7, s31, v6
              v_and_b32 v7, 1, v7
              v_sub_u32 v5, v5, v7
              v_add_u32 v7, 5, v5
              v_min_u32 v5, v5, v7
              v_lshl_add_u32 v7, v5, 4, v3
              v_mad_u32_u24 v7, v6, s35, v7
              s_or_b64 vcc, vcc, s[32:33]
              s_and_b64 exec, vcc, s[36:37]
              buffer_store_dwordx4 {vr(32+4*i,4)}, v7, s[12:15], 0 offen {st}
              s_mov_b64 exec, -1""")
    stamp(a, 2)
    stamp_flush(a, 0, 5, 12)
    a("k1_exit:\ns_endpgm")

def k3(a):
    TM, NCT, NSL = 128, 2, 4
    a(f"""s_load_dwordx2 s[60:61], s[0:1], 16
          s_load_dwordx4 s[64:67], s[0:1], 40
          s_load_dwordx2 s[68:69], s[0:1], 64""")
    stamp(a, 0)
    a(f"""s_cmp_ge_u32 s2, 160
          s_cbranch_scc1 k3_exit
          v_lshrrev_b32 v1, 6, v0
          s_and_b32 s17, s2, 7
          s_lshr_b32 s18, s2, 3
          v_readfirstlane_b32 s16, v1
          s_lshr_b32 s19, s17, 2
          s_and_b32 s20, s17, 3
          s_and_b32 s22, s18, 3
          s_lshr_b32 s23, s18, 2
          s_lshl_b32 s20, s20, 2
          s_add_u32 s22, s22, s20
          s_lshl_b32 s24, s22, 11
          s_mul_i32 s26, s19, {WS_OB-WS_OA}
          s_add_u32 s24, s24, s26
          s_add_u32 s24, s24, {WS_OA}
          s_lshl_b32 s25, s23, 8""")
    loader_lane_setup(a, 1280, True)
    a(f"""s_waitcnt lgkmcnt(0)
          s_cmp_lg_u32 s19, 0
          s_cselect_b32 s60, s64, s60
          s_cselect_b32 s61, s65, s61""")
    srd(a, 4, 68, ws_size())
    srd(a, 8, 60, 640*640*2)
    srd(a, 12, 66, 2048*1280*2)
    a(f"""s_cmp_lt_u32 s16, 4
          s_cbranch_scc1 k3_cons""")
    gemm_loader(a, "k3", TM, NSL, 1280, True, OPT["ld_aux3"], 2, 4)
    a(f"""k3_cons:
          s_lshr_b32 s40, s16, 1
          s_lshl_b32 s40, s40, 6
          s_and_b32 s41, s16, 1
          s_lshl_b32 s41, s41, 1""")
    gemm_consumer_setup(a, TM, NCT, True)
    a(f"""v_and_b32 v1, 31, v0
          v_bfe_u32 v2, v0, 5, 1
          s_lshl_b32 s30, s22, 7
          s_add_u32 s30, s30, s40
          v_add_u32 v1, s30, v1
          v_mul_u32_u24 v1, 2560, v1
          v_lshl_add_u32 v1, v2, 4, v1
          s_mul_i32 s30, s19, 1280
          s_add_u32 s30, s30, s25
          s_lshl_b32 s31, s41, 6
          s_add_u32 s30, s30, s31
          v_add_u32 v1, s30, v1
          v_add_u32 v2, {32*2560}, v1""")
    gemm_mainloop(a, "k3T", TM, NCT, NSL, False, True)
    stamp(a, 1)
    n = 0
    for tt in range(2):
        for c in range(NCT):
            for pr in range(2):
                r = ACC + (tt * NCT + c) * 16 + 8 * pr
                d = 32 + 4 * (n & 7)
                for q in range(4):
                    a(f"v_cvt_pk_bf16_f32 v{d+q}, v{r+2*q}, v{r+2*q+1}")
                a(f"""s_nop 1
                      v_permlane32_swap_b32 v{d}, v{d+2}
                      v_permlane32_swap_b32 v{d+1}, v{d+3}
                      buffer_store_dwordx4 {vr(d,4)}, v{1+tt}, s[12:15], 0 offen offset:{c*64+pr*32} {OPT['st3']}""")
                n += 1
    stamp(a, 2)
    stamp_flush(a, 2, 5, 4)
    a("k3_exit:\ns_endpgm")

VKA, VKT, VV = 8, 10, 11
OMAIN, OTAIL = 12, 13
QM, QT0, QT1 = 16, 20, 22
KM, KT, PA, PB = 24, 28, 40, 44
VF = [32, 36, 112, 116]
S0, S1, CR, OR_ = 48, 64, 80, 96
KB_ = 12288
SLOT = KB_ + 12288
L_FLAG = 3 * SLOT + 512
K2_LDS = L_FLAG + 64

def k2_dma(a):
    a(f"s_add_u32 s30, s28, s29\ns_add_u32 s31, s28, s33")
    for i in range(3):
        a(f"""s_add_u32 m0, s30, {i*4096}
              s_mov_b64 exec, -1
              buffer_load_dwordx4 v16, s[4:7], s{54+i} offen lds
              s_add_u32 m0, s31, {i*1024}
              s_mov_b64 exec, s[{20+2*i}:{21+2*i}]
              buffer_load_dwordx4 v{19+i}, s[4:7], s27 offen lds
              s_add_u32 s{54+i}, s{54+i}, 4096""")
    a(f"""s_mov_b64 exec, -1
          s_add_u32 s27, s27, 10240
          s_add_u32 s28, s28, {SLOT}
          s_cmp_eq_u32 s28, {3*SLOT}
          s_cselect_b32 s28, 0, s28""")
def k2_dma_reset(a):
    a(f"""s_mov_b32 s27, s26
          s_add_u32 s54, s14, s29
          s_add_u32 s54, s54, {WS_KA}
          s_add_u32 s55, s54, {OSTR}
          s_add_u32 s56, s15, s29
          s_and_b32 s56, s56, 0xfffffff0
          s_add_u32 s56, s56, {WS_KA}""")

def qk(S, tpar, C, km=KM):
    return [f"v_mfma_f32_32x32x16_bf16 {vr(S,16)}, {vr(km,4)}, {vr(QM,4)}, {C}",
            f"v_mfma_f32_32x32x8_bf16 {vr(S,16)}, {vr(KT,2)}, {vr(QT1 if tpar else QT0,2)}, {vr(S,16)}"]
def km_read(t, dst=KM):
    return f"ds_read_b128 {vr(dst,4)}, v{VKA} offset:{t*512}"

def norm_store(a, O, soff, eps, off=0):
    a(f"""v_mov_b32 v2, v{O+8}
          v_mov_b32 v3, v{O+8}
          s_nop 1
          v_permlane32_swap_b32 v2, v3""")
    if eps: a(f"s_nop 0\nv_add_f32 v3, s52, v3")
    a(f"""s_nop 0
          v_rcp_f32 v4, v3
          s_nop 0""")
    for r in range(12):
        a(f"v_mul_f32 v{O+r}, v4, v{O+r}")
    for q in range(6):
        a(f"v_cvt_pk_bf16_f32 v{O+q}, v{O+2*q}, v{O+2*q+1}")
    a(f"""s_mov_b64 exec, s[34:35]
          buffer_store_dwordx2 {vr(O+4,2)}, v{OTAIL}, s[4:7], {soff} offen offset:{off} {OPT['st2']}
          s_mov_b64 exec, -1
          v_permlane32_swap_b32 v{O}, v{O+2}
          v_permlane32_swap_b32 v{O+1}, v{O+3}
          buffer_store_dwordx4 {vr(O,4)}, v{OMAIN}, s[4:7], {soff} offen offset:{off} {OPT['st2']}""")

def o_addr(a, tok):
    a(f"""v_lshlrev_b32 v{OTAIL}, 4, v{tok}
          v_mul_u32_u24 v{OMAIN}, {OSTR}, v3
          v_add3_u32 v{OMAIN}, s14, v{OMAIN}, v{OTAIL}
          v_add_u32 v{OTAIL}, s15, v{OTAIL}""")

def k2(a):
    a(f"""s_load_dwordx2 s[8:9], s[0:1], 64
          s_load_dwordx2 s[60:61], s[0:1], 16
          s_load_dwordx2 s[62:63], s[0:1], 40""")
    stamp(a, 0)
    a(f"""s_cmp_ge_u32 s2, 256
          s_cbranch_scc1 k2_exit
          v_lshrrev_b32 v1, 6, v0
          s_and_b32 s42, s2, 7
          s_lshr_b32 s43, s2, 3
          v_readfirstlane_b32 s16, v1
          s_lshl_b32 s17, s42, 2
          s_and_b32 s19, s43, 3
          s_add_u32 s17, s17, s19
          s_lshr_b32 s18, s43, 2
          s_mul_i32 s19, s17, {HS}
          v_and_b32 v1, 63, v0
          v_and_b32 v2, 31, v1
          v_lshrrev_b32 v3, 5, v1
          s_mov_b32 s34, -1
          s_mov_b32 s35, 0
          s_mov_b32 s36, 0
          s_mov_b32 s37, -1
          s_mov_b32 s53, 0
          s_lshr_b32 s30, s17, 1
          s_mul_i32 s30, s30, {5*OSTR}
          s_and_b32 s44, s17, 1
          s_mul_i32 s14, s44, {3*OSTR}
          s_add_u32 s14, s14, s30
          s_lshl_b32 s44, s44, 3
          s_add_u32 s15, s30, s44
          s_add_u32 s15, s15, {2*OSTR}
          s_cmp_lt_u32 s16, 8
          s_cbranch_scc1 k2_attn""")
    a(f"""s_sub_u32 s45, s16, 8
          s_lshl_b32 s29, s45, 10
          s_mul_i32 s33, s45, 3072
          s_add_u32 s33, s33, {KB_}
          s_add_u32 s26, s19, {WS_VA}
          v_lshlrev_b32 v16, 4, v1
          s_mul_i32 s30, s45, {8*320}""")
    for i in range(3):
        m = 0
        for l in range(64):
            if (64 * i + l) % 24 < 20: m |= 1 << l
        a(f"""v_add_u32 v5, {64*i}, v1
              v_mul_u32_u24 v6, 2731, v5
              v_lshrrev_b32 v6, 16, v6
              v_lshlrev_b32 v6, 6, v6
              v_lshlrev_b32 v5, 4, v5
              v_sub_u32 v5, v5, v6
              v_add_u32 v{19+i}, s30, v5
              s_mov_b32 s{20+2*i}, {m & 0xffffffff}
              s_mov_b32 s{21+2*i}, {m >> 32}""")
    k2_dma_reset(a)
    a(f"""s_mov_b32 s28, 0
          s_setprio {OPT['hprio']}
          s_waitcnt lgkmcnt(0)""")
    srd(a, 4, 8, ws_size())
    k2_dma(a)
    k2_dma(a)
    KVP0, QB = 32, 128
    a(f"""s_lshl_b32 s30, s45, 6
          v_add_u32 v4, s30, v2
          v_mul_u32_u24 v14, 80, v2
          v_add_u32 v15, 64, v14
          v_lshl_add_u32 v14, v3, 5, v14
          s_lshl_b32 s30, s18, 8
          v_add_u32 v4, s30, v4
          s_mul_i32 s46, s17, 1680
          s_add_u32 s46, s46, {WS_KVP}
          s_mov_b32 s47, {WS_QB}
          s_mov_b32 s38, 0x1fffff
          s_mov_b32 s39, 0x1fffff
          s_mov_b32 s40, 0x1fffff
          s_mov_b32 s41, 0
          s_mov_b32 s52, {fbits(1e-6)}
          s_mov_b32 s48, {WS_OB}""")
    o_addr(a, 4)
    for r in range(KVP0, KVP0 + 96, 2): a(f"v_pk_mov_b32 {vr(r,2)}, 0, 0")
    for u in range(2): a(f"v_pk_mov_b32 {vr(QB+6*u+4,2)}, 0, 0")
    a(f"""s_waitcnt vmcnt(6)
          s_barrier""")
    stamp(a, 1)
    for u in range(2):
        a(f"buffer_load_dwordx4 {vr(QB+6*u,4)}, v{OMAIN}, s[4:7], s47 offen offset:{512*u}")
    a("s_mov_b64 exec, s[34:35]")
    for u in range(2):
        a(f"buffer_load_dwordx2 {vr(QB+6*u+4,2)}, v{OTAIL}, s[4:7], s47 offen offset:{512*u}")
    for w in range(8):
        a(f"""s_mov_b64 exec, s[38:39]
              buffer_load_dwordx4 {vr(KVP0+12*w,4)}, v14, s[4:7], s46 offen
              buffer_load_dwordx4 {vr(KVP0+12*w+4,4)}, v14, s[4:7], s46 offen offset:16
              s_mov_b64 exec, s[40:41]
              buffer_load_dwordx4 {vr(KVP0+12*w+8,4)}, v15, s[4:7], s46 offen
              s_add_u32 s46, s46, {32*1680}""")
    a("s_mov_b64 exec, -1\ns_waitcnt vmcnt(28)\ns_barrier")
    k2_dma(a)
    for w in range(1, 8):
        a(f"s_waitcnt vmcnt({6+3*(7-w)})")
        for r in range(0, 12, 2):
            a(f"v_pk_add_f32 {vr(KVP0+r,2)}, {vr(KVP0+r,2)}, {vr(KVP0+12*w+r,2)}")
    for q in range(6):
        a(f"v_cvt_pk_bf16_f32 v{KVP0+q}, v{KVP0+2*q}, v{KVP0+2*q+1}")
    a("s_nop 1")
    for u in range(2):
        D = S0 + 16 * u
        a(f"""v_mfma_f32_32x32x16_bf16 {vr(D,16)}, {vr(KVP0,4)}, {vr(QB+6*u,4)}, 0
              v_mfma_f32_32x32x8_bf16 {vr(D,16)}, {vr(KVP0+4,2)}, {vr(QB+6*u+4,2)}, {vr(D,16)}""")
    a(f"""s_cmp_ge_u32 s42, 4
          s_cselect_b32 s60, s62, s60
          s_cselect_b32 s61, s63, s61""")
    srd(a, 8, 60, 640*640*2)
    a(f"""s_lshl_b32 s58, s43, 2
          s_add_u32 s58, s58, s45
          s_mul_i32 s58, s58, 6400
          v_lshlrev_b32 v5, 4, v1
          s_mov_b32 s45, 1""")
    for u in range(2): norm_store(a, S0 + 16 * u, "s48", True, 512 * u)
    stamp(a, 2)
    a(f"""k2_hloop:
          s_waitcnt vmcnt(1)
          s_barrier
          s_cmp_ge_u32 s45, 6
          s_cbranch_scc1 k2_hnodma""")
    k2_dma(a)
    a(f"""k2_hnodma:
          buffer_load_dwordx4 v[96:99], v5, s[8:11], s58 offen
          s_add_u32 s58, s58, {0 if OPT['nopf'] else 1024}
          s_add_u32 s45, s45, 1
          s_cmp_lt_u32 s45, 7
          s_cbranch_scc1 k2_hloop
          buffer_load_dwordx4 v[96:99], v5, s[8:11], s58 offen""")
    stamp(a, 3)
    stamp_flush(a, 1, 6, 4)
    a(f"""s_cmp_lg_u32 s53, 0
          s_cbranch_scc1 k2_exit
          v_mov_b32 v6, {L_FLAG}
          s_barrier
          ds_read_b32 v7, v6
          s_waitcnt lgkmcnt(0)
          v_readfirstlane_b32 s30, v7
          s_nop 3
          s_cmp_eq_u32 s30, 0
          s_cbranch_scc1 k2_exit
          s_mov_b32 s53, 1
          s_mov_b32 s45, 0""")
    k2_dma_reset(a)
    a(f"""k2_hmx:
          s_mov_b32 s28, 0""")
    k2_dma(a)
    a(f"""s_waitcnt vmcnt(0)
          s_barrier
          s_barrier
          s_add_u32 s45, s45, 1
          s_cmp_lt_u32 s45, 8
          s_cbranch_scc1 k2_hmx
          s_mov_b32 s28, 0""")
    k2_dma_reset(a)
    k2_dma(a)
    k2_dma(a)
    a(f"""s_waitcnt vmcnt(6)
          s_barrier
          s_mov_b32 s45, 0
          s_waitcnt vmcnt(0)
          s_branch k2_hloop""")
    a(f"""k2_attn:
          s_lshl_b32 s30, s16, 5
          s_lshl_b32 s31, s18, 8
          s_add_u32 s30, s30, s31
          v_add_u32 v4, s30, v2""")
    o_addr(a, 4)
    a("s_waitcnt lgkmcnt(0)")
    srd(a, 4, 8, ws_size())
    a(f"""buffer_load_dwordx4 {vr(QM,4)}, v{OMAIN}, s[4:7], 0 offen
          buffer_load_dwordx2 {vr(QT0,2)}, v{OTAIL}, s[4:7], 0 offen
          s_mov_b32 s48, {WS_OA}
          v_lshlrev_b32 v{VKA}, 4, v2
          v_lshl_add_u32 v{VKA}, v3, 12, v{VKA}
          v_lshlrev_b32 v{VKT}, 4, v1
          s_add_u32 s30, s44, 8192
          v_add_u32 v{VKT}, s30, v{VKT}
          v_min_u32 v5, 21, v2
          v_cmp_le_u32 vcc, 28, v2
          v_mul_u32_u24 v{VV}, 384, v3
          v_add_u32 v{VV}, {KB_}, v{VV}
          v_cndmask_b32 v5, v5, 45, vcc
          v_lshl_add_u32 v{VV}, v5, 4, v{VV}""")
    a(f"""v_lshrrev_b32 v5, 1, v0
          v_and_b32 v6, 1, v0
          v_lshrrev_b32 v7, 5, v5
          v_mul_u32_u24 v7, {SLOT - 32*384}, v7
          v_mul_u32_u24 v5, 384, v5
          v_lshl_add_u32 v5, v6, 4, v5
          v_add_u32 v7, {KB_+320}, v7
          v_add_u32 v5, v5, v7
          v_subrev_u32 v6, 1, v6
          v_and_b32 v{PA}, 0x3f803f80, v6
          v_mov_b32 v{PA+1}, v{PA}
          v_mov_b32 v{PA+2}, v{PA}
          v_mov_b32 v{PA+3}, v{PA}
          v_mov_b32 v6, {L_FLAG}
          v_mov_b32 v7, 0
          v_cmp_gt_u32 vcc, 192, v0
          ds_write_b32 v6, v7
          s_and_saveexec_b64 s[32:33], vcc
          s_cbranch_execz k2_noinit
          ds_write_b128 v5, {vr(PA,4)}
          k2_noinit:
          s_mov_b64 exec, -1
          s_setprio {OPT['aprio']}
          s_waitcnt vmcnt(0)
          v_mov_b32 v{QT1}, v{QT0}
          v_mov_b32 v{QT1+1}, v{QT0+1}
          s_mov_b64 exec, s[36:37]
          v_mov_b32 v{QT0}, 0
          v_mov_b32 v{QT0+1}, 0
          s_mov_b64 exec, s[34:35]
          v_mov_b32 v{QT1}, 0
          v_mov_b32 v{QT1+1}, 0
          s_mov_b64 exec, -1
          k2_restart:""")
    for r in range(0, 16, 2): a(f"v_pk_mov_b32 {vr(OR_+r,2)}, 0, 0")
    for r in range(0, 4, 2): a(f"v_pk_mov_b32 {vr(PB+r,2)}, 0, 0\nv_pk_mov_b32 {vr(VF[3]+r,2)}, 0, 0")
    a(f"""s_waitcnt lgkmcnt(0)
          s_barrier""")
    stamp(a, 1)
    a(f"""{km_read(0)}
          ds_read_b64 {vr(KT,2)}, v{VKT}
          ds_read_b128 {vr(VF[0],4)}, v{VV}
          ds_read_b128 {vr(VF[1],4)}, v{VV} offset:768
          s_cmp_lg_u32 s53, 0
          s_cbranch_scc1 k2_havemax
          s_waitcnt lgkmcnt(2)""")
    for m in qk(S0, 0, "0"): a(m)
    a("s_nop 7\ns_nop 3")
    a(f"v_max3_f32 v2, v{S0}, v{S0+1}, v{S0+2}")
    for r in range(3, 15, 2):
        a(f"v_max3_f32 v2, v2, v{S0+r}, v{S0+r+1}")
    a(f"""v_max_f32 v2, v2, v{S0+15}
          k2_setmax:
          v_mov_b32 v3, v2
          s_nop 1
          v_permlane32_swap_b32 v2, v3
          s_nop 1
          v_max_f32 v2, v2, v3
          v_sub_f32 v2, 0, v2
          v_mov_b32 v3, v2""")
    for r in range(0, 16, 2): a(f"v_pk_mov_b32 {vr(CR+r,2)}, v[2:3], v[2:3]")
    a(f"""s_cmp_lg_u32 s53, 0
          s_cbranch_scc1 k2_restart
          k2_havemax:
          s_waitcnt lgkmcnt(2)""")
    for m in qk(S0, 0, vr(CR, 16)): a(m)
    a(f"""{km_read(1)}
          s_mov_b32 s45, 0
          s_mov_b32 s46, 0
          s_mov_b32 s49, {SLOT}
          s_nop 7""")
    stamp(a, 4)
    a(f"k2_loop:")
    for t in range(8):
        cur, nxt = (S0, S1) if t % 2 == 0 else (S1, S0)
        va, vbn, van = VF[2 * (t & 1)], VF[2 * ((t + 1) & 1) + 1], VF[2 * ((t + 1) & 1)]
        m = qk(nxt, (t + 1) & 1, vr(CR, 16))
        e = lambda i: f"v_exp_f32 v{cur+i}, v{cur+i}"
        c = lambda i: f"v_cvt_pk_bf16_f32 v{(PA if i < 4 else PB - 4) + i}, v{cur+2*i}, v{cur+2*i+1}"
        a("s_waitcnt lgkmcnt(0)")
        a(m[0])
        if t == 0:
            a(f"""s_add_u32 s46, s46, 1
                  s_cmp_eq_u32 s46, 3
                  s_cselect_b32 s47, {(-2*SLOT) & 0xffffffff}, s49
                  s_cselect_b32 s46, 0, s46
                  s_add_u32 s45, s45, 1""")
        if t == 6:
            a(f"""s_cmp_eq_u32 s45, 8
                  s_cbranch_scc1 k2_nobar
                  s_barrier
                  k2_nobar:
                  v_add_u32 v{VKA}, s47, v{VKA}
                  v_add_u32 v{VKT}, s47, v{VKT}""")
        if t == 7: a(f"v_add_u32 v{VV}, s47, v{VV}")
        a(km_read((t + 2) & 7))
        for x in (e(0), e(1), e(2), e(3), c(0), c(1)): a(x)
        a(m[1])
        if (t + 1) & 1: a(f"ds_read_b64 {vr(KT,2)}, v{VKT} offset:{(((t+2)//2)&3)*1024}")
        a(f"ds_read_b128 {vr(van,4)}, v{VV} offset:{((t+1)&7)*1536}")
        for x in (e(4), e(5), e(6), e(7), c(2), c(3)): a(x)
        a(f"v_mfma_f32_32x32x16_bf16 {vr(OR_,16)}, {vr(vbn,4)}, {vr(PB,4)}, {vr(OR_,16)}")
        a(f"ds_read_b128 {vr(vbn,4)}, v{VV} offset:{((t+1)&7)*1536+768}")
        for x in (e(8), e(9), e(10), e(11), c(4), c(5)): a(x)
        a(f"v_mfma_f32_32x32x16_bf16 {vr(OR_,16)}, {vr(va,4)}, {vr(PA,4)}, {vr(OR_,16)}")
        if t == 7: a("s_cmp_lt_u32 s45, 8")
        for x in (e(12), e(13), e(14), e(15), c(6), c(7)): a(x)
    a(f"""s_cbranch_scc1 k2_loop
          s_nop 0
          v_mfma_f32_32x32x16_bf16 {vr(OR_,16)}, {vr(VF[3],4)}, {vr(PB,4)}, {vr(OR_,16)}""")
    stamp(a, 2)
    for r in (VKA, VKT, VV): a(f"v_subrev_u32 v{r}, {2*SLOT}, v{r}")
    a(f"""v_mov_b32 v6, {L_FLAG}
          v_mov_b32 v7, 1
          s_mov_b32 s30, {fbits(2.0**40)}
          s_waitcnt lgkmcnt(0)
          s_nop 4""")
    norm_store(a, OR_, "s48", False)
    stamp(a, 3); stamp(a, 5)
    stamp_flush(a, 1, 6, 4)
    a(f"""v_cmp_nle_f32 vcc, v3, s30
          s_cmp_lg_u32 s53, 0
          s_cbranch_scc1 k2_exit
          s_cmp_eq_u64 vcc, 0
          s_cbranch_scc1 k2_ok
          ds_write_b32 v6, v7
          s_waitcnt lgkmcnt(0)
          k2_ok:
          s_barrier
          ds_read_b32 v7, v6
          s_waitcnt lgkmcnt(0)
          v_readfirstlane_b32 s30, v7
          s_nop 3
          s_cmp_eq_u32 s30, 0
          s_cbranch_scc1 k2_exit""")
    a(f"""s_mov_b32 s53, 1
          s_mov_b32 s45, 0
          v_mov_b32 v2, 0xff800000
          k2_mx_loop:
          s_barrier
          s_mov_b32 s46, 0
          v_mov_b32 v5, v{VKA}
          v_mov_b32 v6, v{VKT}
          k2_mx_pair:
          ds_read_b128 {vr(KM,4)}, v5
          ds_read_b128 {vr(VF[0],4)}, v5 offset:512
          ds_read_b64 {vr(KT,2)}, v6
          s_waitcnt lgkmcnt(0)""")
    for m in qk(S0, 0, "0"): a(m)
    for m in qk(S1, 1, "0", VF[0]): a(m)
    a(f"""v_add_u32 v5, 1024, v5
          v_add_u32 v6, 1024, v6
          s_nop 7
          s_nop 3""")
    for r in range(0, 32, 2):
        a(f"v_max3_f32 v2, v2, v{S0+r}, v{S0+r+1}")
    a(f"""s_add_u32 s46, s46, 1
          s_cmp_lt_u32 s46, 4
          s_cbranch_scc1 k2_mx_pair
          s_barrier
          s_add_u32 s45, s45, 1
          s_cmp_lt_u32 s45, 8
          s_cbranch_scc1 k2_mx_loop
          s_branch k2_setmax
          k2_exit:
          s_endpgm""")

def kdiag(a):
    ka, ia, kb, ib = map(int, OPT["diag"].split(","))
    a(f"""s_cmp_ge_u32 s2, 1
          s_cbranch_scc1 kd_exit
          s_load_dwordx2 s[8:9], s[0:1], 64
          v_lshlrev_b32 v1, 9, v0
          s_waitcnt lgkmcnt(0)""")
    srd(a, 4, 8, WS_SIZE + 0x400000)
    a(f"""s_mov_b32 s10, {WS_SIZE + ka*0x40000 + ia*4}
          s_mov_b32 s11, {WS_SIZE + kb*0x40000 + ib*4}
          s_add_u32 s12, s10, {64*512}
          s_add_u32 s13, s11, {64*512}
          buffer_load_dword v2, v1, s[4:7], s10 offen sc1
          buffer_load_dword v3, v1, s[4:7], s12 offen sc1
          buffer_load_dword v4, v1, s[4:7], s11 offen sc1
          buffer_load_dword v5, v1, s[4:7], s13 offen sc1
          s_waitcnt vmcnt(0)
          v_readfirstlane_b32 s14, v2
          s_nop 3
          v_subrev_u32 v2, s14, v2
          v_subrev_u32 v3, s14, v3
          v_subrev_u32 v4, s14, v4
          v_subrev_u32 v5, s14, v5
          v_min_i32 v2, v2, v3
          v_max_i32 v4, v4, v5
          s_mov_b32 s15, 0x7fffffff
          s_mov_b32 s16, 0x80000000
          s_nop 1""")
    for l in range(64):
        a(f"""v_readlane_b32 s17, v2, {l}
              v_readlane_b32 s18, v4, {l}
              s_nop 1
              s_min_i32 s15, s15, s17
              s_max_i32 s16, s16, s18""")
    a(f"""s_sub_u32 s16, s16, s15
          s_lshl_b32 s16, s16, 2
          s_min_u32 s16, s16, 100000
          s_memrealtime s[20:21]
          s_waitcnt lgkmcnt(0)
          kd_spin:
          s_memrealtime s[22:23]
          s_waitcnt lgkmcnt(0)
          s_sub_u32 s24, s22, s20
          s_cmp_lt_u32 s24, s16
          s_cbranch_scc1 kd_spin
          kd_exit:
          s_endpgm""")

HEADER = open("cdna_kernels/" + NAME + ".s.ref").read().split("; Override launch")[0]

def build():
    kernels = [("k1_qkv_kernel", k1, 256, 512, 3 * (256 * 128 + 16384), 256),
               ("k2_attn_kernel", k2, 256, 768, K2_LDS, 144),
               ("k3_proj_kernel", k3, 160, 512, 4 * (128 * 128 + 16384), 192)]
    for i in range(int(OPT['empties'])):
        kernels.append((f"e{i}_kernel", lambda a: a("s_endpgm"), 1, 64, 0, 8))
    if OPT['diag']:
        kernels.append(("kd_kernel", kdiag, 1, 64, 0, 8))
    out = HEADER + f"; layout OA={WS_OA} OB={WS_OB} OSTR={OSTR}\n"
    for n, f, g, b, lds, nv in kernels:
        out += f"; @launch kernel={n} grid=({g},1,1) block=({b},1,1) lds={lds}\n"
    out += '.amdgcn_target "amdgcn-amd-amdhsa--gfx950"\n.text\n'
    for n, f, g, b, lds, nv in kernels:
        a = Asm(); f(a)
        body = a.text()
        for h in check_hazards(body): print(n, h, file=sys.stderr)
        out += f".globl {n}\n.p2align 8\n.type {n},@function\n{n}:\n" + body
    out += '.section .rodata,"a"\n'
    for n, f, g, b, lds, nv in kernels:
        out += f""".p2align 6
.amdhsa_kernel {n}
  .amdhsa_next_free_vgpr {nv}
  .amdhsa_next_free_sgpr 102
  .amdhsa_accum_offset {(nv+3)//4*4}
  .amdhsa_group_segment_fixed_size 0
  .amdhsa_kernarg_size 72
  .amdhsa_user_sgpr_count 2
  .amdhsa_user_sgpr_kernarg_segment_ptr 1
  .amdhsa_system_sgpr_workgroup_id_x 1
.end_amdhsa_kernel
"""
    return out

if __name__ == "__main__":
    outp = "cdna_kernels/" + NAME + ".s"
    for arg in sys.argv[1:]:
        if "=" in arg:
            k, v = arg.split("=", 1)
            if k == "out": outp = v
            elif k == "OSTR": OSTR = int(v)
            else: OPT[k] = (v == "1") if isinstance(OPT.get(k), bool) else v
    open(outp, "w").write(build())
```
